```python
import torch

def _softmax(x, axis=-1):
    return torch.softmax(x, dim=axis)
def _gelu(x):
    return torch.nn.functional.gelu(x, approximate="tanh")
def _silu(x):
    return torch.nn.functional.silu(x)
def _sigmoid(x):
    return torch.sigmoid(x)
def _layernorm(x, axis=-1, eps=1e-5):
    m = x.mean(dim=axis, keepdim=True)
    v = x.var(dim=axis, keepdim=True, unbiased=False)
    return (x - m) / torch.sqrt(v + eps)
def _scatter_add(tgt, idx, src, axis=0):
    return tgt.clone().index_add_(axis, idx, src)
def _segment_sum(src, seg, n):
    out = torch.zeros((n,) + src.shape[1:], dtype=src.dtype)
    return out.index_add_(0, seg, src)
def _pad(x, pw):
    flat = tuple(v for pair in reversed(pw) for v in pair)
    return torch.nn.functional.pad(x, flat)

kernel_name = 'recurrent_scan__softmax_full_mha__dense_activation_squared_relu__prompt'

def setup_inputs():

    _w = (lambda a: (lambda t: t.to(torch.bfloat16) if t.is_floating_point() else t)(torch.as_tensor(a)))
    def _A_setup():
        B, S, D = 1, 2048, 640
        return {
            "x": _w((lambda *s: torch.randn(*s, dtype=torch.bfloat16) * 0.05)(B, S, D)),
            "wqkv": _w((lambda *s: torch.randn(*s, dtype=torch.bfloat16) * 0.05)(D, 3 * D)),
            "wo": _w((lambda *s: torch.randn(*s, dtype=torch.bfloat16) * 0.05)(D, D)),
        }
    _A_in = _A_setup()

    def _B_setup():
        B, S, D, F = 1, 2048, 640, 1536
        return {
            "x": _w((lambda *s: torch.randn(*s, dtype=torch.bfloat16) * 0.05)(B, S, D)),
            "w1": _w((lambda *s: torch.randn(*s, dtype=torch.bfloat16) * 0.05)(D, F)),
            "b1": _w((lambda *s: torch.randn(*s, dtype=torch.bfloat16) * 0.8)(F)),
            "w2": _w((lambda *s: torch.randn(*s, dtype=torch.bfloat16) * 0.05)(F, D)),
            "b2": _w((lambda *s: torch.randn(*s, dtype=torch.bfloat16) * 3.2)(D)),
        }
    _B_in = _B_setup()

    return {
        "A_x": _A_in["x"],
        "A_wqkv": _A_in["wqkv"],
        "A_wo": _A_in["wo"],
        "B_x": _B_in["x"],
        "B_w1": _B_in["w1"],
        "B_b1": _B_in["b1"],
        "B_w2": _B_in["w2"],
        "B_b2": _B_in["b2"],
    }

def reference(A_x, A_wqkv, A_wo, B_x, B_w1, B_b1, B_w2, B_b2):
    def _A_ref(x, wqkv, wo):
        B, S, D = x.shape
        H = 32; Dh = D // H
        qkv = (lambda x, *d: x.permute(*d))((x @ wqkv).reshape(B, S, 3, H, Dh), 2, 0, 3, 1, 4)
        q, k, v = qkv[0], qkv[1], qkv[2]
        scale = Dh ** -0.5
        scores = torch.einsum("bhqd,bhkd->bhqk", q, k) * scale
        p = _softmax(scores, axis=-1)
        o = torch.einsum("bhqk,bhkd->bhqd", p, v)
        return (lambda x, *d: x.permute(*d))(o, 0, 2, 1, 3).reshape(B, S, D) @ wo

    def _B_ref(x, w1, b1, w2, b2):
        h = torch.einsum("bsd,df->bsf", x, w1) + b1
        zero = torch.zeros_like(h)
        r = torch.where(h > zero, h, zero)
        h = r * r
        out = torch.einsum("bsf,fd->bsd", h, w2) + b2
        return out

    x = A_x
    xn = _layernorm(x, axis=-1)
    s = _A_ref(xn, A_wqkv, A_wo)
    g = _silu(_B_ref(xn, B_w1, B_b1, B_w2, B_b2))
    return x + s * g
```

```python
import struct

def v(a, n=1):
    return f"v{a}" if n == 1 else f"v[{a}:{a+n-1}]"
def s(a, n=1):
    return f"s{a}" if n == 1 else f"s[{a}:{a+n-1}]"
def f32(x):
    return struct.unpack("<I", struct.pack("<f", x))[0]
def hx(x):
    return f"0x{x & 0xffffffff:x}"

class Asm:
    def __init__(self):
        self.lines = []
    def __call__(self, text):
        for l in text.split("\n"):
            l = l.strip()
            if l:
                self.lines.append(l if l.endswith(":") or l.startswith(".") else "    " + l)
    def label(self, name):
        self.lines.append(name + ":")
    def c(self, text):
        self.lines.append("    ; " + text)
    def text(self):
        return "\n".join(self.lines) + "\n"
    def srd(self, d, lo, hi, size):
        self(f"s_mov_b32 s{d}, {lo}")
        self(f"s_and_b32 s{d+1}, {hi}, 0xffff")
        self(f"s_mov_b32 s{d+2}, {size}")
        self(f"s_mov_b32 s{d+3}, 0x20000")

def kernel_head(name):
    return f""".globl {name}
.p2align 8
.type {name},@function
{name}:
"""
def kernel_desc(name, vgpr, sgpr=96, accum=None):
    if accum is None:
        accum = (vgpr + 3)//4*4
    return f""".p2align 6
.amdhsa_kernel {name}
  .amdhsa_next_free_vgpr {vgpr}
  .amdhsa_next_free_sgpr {sgpr}
  .amdhsa_accum_offset {accum}
  .amdhsa_group_segment_fixed_size 0
  .amdhsa_kernarg_size 88
  .amdhsa_user_sgpr_count 2
  .amdhsa_user_sgpr_kernarg_segment_ptr 1
  .amdhsa_system_sgpr_workgroup_id_x 1
  .amdhsa_float_denorm_mode_32 3
.end_amdhsa_kernel
"""

WS_QK = 0
WS_QK_SZ = 320*2048*8
WS_V = WS_QK + WS_QK_SZ
WS_V_SZ = 32*81920
WS_H = WS_V + WS_V_SZ
WS_H_SZ = 64*96*1024
WS_OM = WS_H + WS_H_SZ
WS_OM_SZ = 64*32*1024
WS_OT = WS_OM + WS_OM_SZ
WS_OT_SZ = 64*16*512
WS_F = WS_OT + WS_OT_SZ
WS_F_SZ = 2048*640*2
WS_WP = WS_F + WS_F_SZ
WS_WP_SZ = 136*20*1024
WS_END = WS_WP + WS_WP_SZ

import os
STAMP = bool(int(os.environ.get("STAMP", "0")))
WS_DBG = 32 << 20
class Stamps:
    def __init__(self, a, kidx):
        self.a = a; self.kidx = kidx
    def stamp(self, i):
        if STAMP: self.a(f"s_memtime s[{60+2*i}:{61+2*i}]")
    def real(self, i):
        if STAMP: self.a(f"s_memrealtime s[{60+2*i}:{61+2*i}]")
    def dump(self, n, ws_lo, ws_hi, wave):
        if not STAMP: return
        a = self.a
        a("s_waitcnt lgkmcnt(0) vmcnt(0)")
        a(f"s_memtime s[{60+2*n}:{61+2*n}]")
        a(f"s_memrealtime s[{62+2*n}:{63+2*n}]")
        a("s_waitcnt lgkmcnt(0)")
        a(f"s_mov_b32 s56, {ws_lo}\ns_and_b32 s57, {ws_hi}, 0xffff\ns_mov_b32 s58, 0x8000000\ns_mov_b32 s59, 0x20000")
        a(f"s_lshl_b32 s55, s2, 4\ns_add_u32 s55, s55, {wave}\ns_lshl_b32 s55, s55, 7\ns_add_u32 s55, s55, {WS_DBG + (self.kidx << 20)}")
        a("s_mov_b64 exec, 1\nv_mov_b32 v0, 0")
        for i in range(n+2):
            a(f"v_mov_b32 v1, s{60+2*i}\nbuffer_store_dword v1, v0, s[56:59], s55 offen offset:{4*i}")
        a("s_waitcnt vmcnt(0)")

class VmTrack:
    def __init__(self, a):
        self.a = a; self.n = 0; self.tags = {}
    def op(self, text, tag=None):
        self.a(text); self.n += 1
        if tag is not None: self.tags[tag] = self.n
    def wait(self, tag):
        k = self.n - self.tags[tag]
        assert k <= 63, k
        self.a(f"s_waitcnt vmcnt({k})")
```

```python
from asmlib import *
import math

NT = 7
XST = 16384
WROW = 448
WST = 64*WROW
WBASE = 3*XST
MISC = WBASE + 3*WST
CSP = MISC
XSF = CSP + 7*1024
RSTD = XSF + 4*512
K1_LDS = RSTD + 512
NCH = 10
QSCALE = 20**-0.5 * math.log2(math.e)

STARTS = [0,7,14,21,28,34,40,47,54, 0,7,14,21,28,35,42]
SIX    = [0,0,0,0,1,1,0,0,1, 0,0,0,0,0,0,1]
SC = os.environ.get("K1SC", "")

def gen_k1(name="k1_kernel"):
    a = Asm()
    a(kernel_head(name))
    st_ = Stamps(a, 0)
    st_.real(0); st_.stamp(1)
    def fin():
        st_.dump(8, "s12", "s13", "s20")
        a("s_endpgm")
    tab = []
    for q in range(4):
        w = 0
        for r in range(4):
            w |= (STARTS[q*4+r] | (SIX[q*4+r] << 6)) << (8*r)
        tab.append(w)
    a(f"""
    s_cmp_ge_u32 s2, 256
    s_cbranch_scc1 L1_exit
    s_load_dwordx4 s[4:7], s[0:1], 0
    s_load_dwordx4 s[8:11], s[0:1], 32
    s_load_dwordx2 s[12:13], s[0:1], 80
    s_load_dwordx2 s[48:49], s[0:1], 16
    s_load_dwordx2 s[50:51], s[0:1], 48
    v_lshrrev_b32 v2, 6, v0
    v_and_b32 v1, 63, v0
    v_readfirstlane_b32 s20, v2
    s_and_b32 s14, s2, 7
    s_lshr_b32 s15, s2, 3
    s_and_b32 s16, s14, 1
    s_lshl_b32 s16, s16, 3
    s_and_b32 s17, s15, 7
    s_add_u32 s16, s16, s17          ; rb
    s_lshr_b32 s14, s14, 1           ; cbq
    s_lshr_b32 s15, s15, 3           ; cbr
    s_lshl_b32 s17, s14, 2
    s_add_u32 s17, s17, s15          ; cb
    s_mov_b32 s18, {hx(tab[0])}
    s_cmp_eq_u32 s14, 1
    s_cselect_b32 s18, {hx(tab[1])}, s18
    s_cmp_eq_u32 s14, 2
    s_cselect_b32 s18, {hx(tab[2])}, s18
    s_cmp_eq_u32 s14, 3
    s_cselect_b32 s18, {hx(tab[3])}, s18
    s_lshl_b32 s15, s15, 3
    s_lshr_b32 s18, s18, s15
    s_bfe_u32 s19, s18, 0x10006
    s_and_b32 s18, s18, 63
    s_and_b32 s23, s20, 3            ; w
    v_and_b32 v2, 31, v1             ; row
    v_lshrrev_b32 v3, 5, v1          ; h
    v_bfe_u32 v4, v1, 1, 3           ; (row>>1)&7
    v_xor_b32 v4, v4, v3
    v_lshlrev_b32 v4, 4, v4
    v_lshl_add_u32 v4, v2, 7, v4
    s_lshl_b32 s40, s23, 12
    v_add_u32 v4, s40, v4            ; aX0
    v_xor_b32 v5, 32, v4
    v_xor_b32 v6, 64, v4
    v_xor_b32 v7, 96, v4
    v_bfe_u32 v8, v1, 2, 2           ; j
    v_lshl_add_u32 v8, v3, 3, v8     ; 8h+j
    v_mul_u32_u24 v8, {WROW}, v8
    v_bfe_u32 v9, v1, 4, 1           ; colhalf
    v_lshl_add_u32 v8, v9, 5, v8
    v_and_b32 v9, 3, v1
    v_lshl_add_u32 v8, v9, 3, v8
    v_add_u32 v8, {WBASE}, v8
    s_mov_b32 s21, 0
    s_movk_i32 s22, 3840
    s_mov_b32 s30, {640*3840}
    s_cmp_ge_u32 s17, 6
    s_cselect_b32 s21, 1, s21
    s_cmp_ge_u32 s17, 9
    s_cselect_b32 s21, 2, s21
    s_cselect_b32 s22, 3072, s22     ; ldw
    s_cselect_b32 s30, {640*3072}, s30
    s_cselect_b32 s34, 3072, 0
    s_cmp_ge_u32 s20, 4
    s_cbranch_scc1 L1_loader
    s_waitcnt lgkmcnt(0)
    s_mov_b32 s32, s10
    s_and_b32 s33, s11, 0xffff
    s_mov_b32 s35, 0x20000
    """)
    a.srd(36, "s12", "s13", WS_END)
    ACC = 80
    SETS = [(12, 16), (44, 48)]
    EW = 192; EX = 12; RS = 206; PT = 16
    a(f"""
    v_add_u32 v9, {WST}, v8
    v_add_u32 v10, {2*WST}, v8
    s_lshl_b32 s46, s18, 6
    v_lshlrev_b32 v11, 1, v2
    v_lshl_add_u32 v11, v3, 31, v11
    """)
    for t in range(NT):
        a(f"buffer_load_ushort v{EW+2*t+1}, v11, s[32:35], s46 offen offset:{64*t}")
    for i in range(NT*16):
        a(f"v_mov_b32 v{ACC+i}, 0")
    a("s_cmp_eq_u32 s21, 1\ns_cbranch_scc1 L1_compV")

    def reads(setn, stage, ks):
        xr, wr = SETS[setn]
        r = [f"ds_read_b128 {v(xr,4)}, v{4+ks} offset:{stage*XST}"]
        for t in range(NT):
            off = ks*16*WROW + t*64
            r.append(f"ds_read_b64_tr_b16 {v(wr+4*t,2)}, v{8+stage} offset:{off}")
            r.append(f"ds_read_b64_tr_b16 {v(wr+4*t+2,2)}, v{8+stage} offset:{off+4*WROW}")
        return r
    def mfma(var, setn, t):
        xr, wr = SETS[setn]
        A, B = (v(wr+4*t,4), v(xr,4)) if var == "T" else (v(xr,4), v(wr+4*t,4))
        return f"v_mfma_f32_32x32x16_bf16 {v(ACC+16*t,16)}, {A}, {B}, {v(ACC+16*t,16)}"
    def kstep(var, cur, rd, barrier, per=3):
        a("s_waitcnt lgkmcnt(0)")
        rd = list(rd)
        for t in range(NT):
            a(mfma(var, cur, t))
            if barrier and t == 0:
                a("s_barrier")
                continue
            for _ in range(per):
                if rd: a(rd.pop(0))
        return rd
    def csfin(t):
        b = PT + 4*t
        return [f"v_add_f32 v{b}, v{b}, v{b+1}", f"v_add_f32 v{b+2}, v{b+2}, v{b+3}", f"v_add_f32 v{b}, v{b}, v{b+2}",
                f"v_and_b32 v{b+1}, 0xffff0000, v{b}", f"v_sub_f32 v{b}, v{b}, v{b+1}", f"v_cvt_pk_bf16_f32 v{EW+2*t}, v{b+1}, v{b}"]
    def compute(var):
        st_.stamp(2)
        a("s_barrier")
        st_.stamp(3)
        for r in reads(0, 0, 0): a(r)
        a("s_mov_b32 s41, 3")
        a(".p2align 3")
        a.label(f"L1_loop{var}")
        for st in range(3):
            for ks in range(4):
                cur = ks & 1
                if ks < 3: assert not kstep(var, cur, reads(cur ^ 1, st, ks+1), False)
                else: assert not kstep(var, cur, reads(cur ^ 1, (st+1) % 3, 0), True)
        a(f"s_sub_u32 s41, s41, 1\ns_cmp_lg_u32 s41, 0\ns_cbranch_scc1 L1_loop{var}")
        st_.stamp(4)
        kstep(var, 0, reads(1, 0, 1), False)
        kstep(var, 1, reads(0, 0, 2), False)
        extra = [f"v_lshlrev_b32 v4, 4, v1", f"v_add_u32 v4, {CSP}, v4", f"s_lshl_b32 s40, s23, 9\ns_add_u32 s40, s40, {XSF}",
                 f"v_lshl_add_u32 v5, v1, 3, s40", f"s_lshl_b32 s40, s23, 7\ns_add_u32 s40, s40, {RSTD}",
                 "v_lshl_add_u32 v6, v2, 2, s40" if var == "T" else "v_lshl_add_u32 v6, v3, 4, s40"]
        assert not kstep(var, 0, reads(1, 0, 3) + extra, False)
        rd = [f"ds_read_b128 {v(PT+4*t,4)}, v4 offset:{t*1024}" for t in range(NT)]
        rd += [f"ds_read_b64 {v(EX,2)}, v5"]
        if var == "T":
            rd += [f"ds_read_b32 v{RS}, v6"]
        else:
            rd += [f"ds_read_b128 {v(RS+4*g,4)}, v6 offset:{32*g}" for g in range(4)]
        nafter = len(rd) - 2
        while len(rd) < 16: rd.append("")
        rd += [f"s_waitcnt vmcnt(0) lgkmcnt({nafter})"] + csfin(0)[:3] + csfin(0)[3:] + csfin(1)
        rest = kstep(var, 1, rd, True, per=4)
        for r in rest: a(r)
        st_.stamp(5)
        a("s_waitcnt lgkmcnt(0)")
    def emfma(var, t):
        A, B = (v(EW+2*t,2), v(EX,2)) if var == "T" else (v(EX,2), v(EW+2*t,2))
        return f"v_mfma_f32_32x32x8_bf16 {v(ACC+16*t,16)}, {A}, {B}, {v(ACC+16*t,16)}"
    def cvt(t):
        b = ACC+16*t
        for i in range(8):
            a(f"v_cvt_pk_bf16_f32 v{b+i}, v{b+2*i}, v{b+2*i+1}")
    def epi_start(var):
        a(emfma(var, 0))
        for x in csfin(2): a(x)
        a(emfma(var, 1))
        for x in csfin(3): a(x)
    def epi_tile(var, t):
        if t == NT-1:
            a("s_cmp_eq_u32 s19, 1\ns_cbranch_scc1 L1_done")
        if t+2 < NT: a(emfma(var, t+2))
        if t+4 < NT:
            for x in csfin(t+4): a(x)

    compute("T")
    epi_start("T")
    a(f"s_lshl_b32 s42, s16, 2\ns_add_u32 s42, s42, s23      ; tb")
    a("s_cmp_eq_u32 s21, 2\ns_cbranch_scc1 L1_epiF")
    a(f"""
    s_lshl_b32 s43, s42, 8
    v_lshlrev_b32 v4, 14, v3
    v_lshl_add_u32 v4, v2, 3, v4
    v_add_u32 v4, s43, v4            ; (h*2048 + token)*8
    s_lshl_b32 s43, s18, 17          ; start*8*16384
    s_mov_b32 s44, s18
    """)
    for t in range(NT):
        epi_tile("T", t)
        a(f"s_cmp_lt_u32 s44, 20\ns_cselect_b32 s45, {hx(f32(QSCALE))}, 1.0\ns_add_u32 s44, s44, 1")
        a(f"v_mul_f32 v{RS+2}, s45, v{RS}")
        b = ACC+16*t
        for i in range(8):
            a(f"v_pk_mul_f32 {v(b+2*i,2)}, {v(b+2*i,2)}, {v(RS+2,2)} op_sel_hi:[1,0]")
        cvt(t)
        for g in range(4):
            a(f"buffer_store_dwordx2 {v(b+2*g,2)}, v4, s[36:39], s43 offen {SC}")
            a(f"s_add_u32 s43, s43, 32768")
    a("s_branch L1_done")
    a.label("L1_epiF")
    a(f"""
    v_lshlrev_b32 v4, 4, v1
    s_mul_i32 s43, s42, 96
    s_lshl_b32 s44, s18, 1
    s_add_u32 s43, s43, s44
    s_lshl_b32 s43, s43, 10
    s_add_u32 s43, s43, {WS_H}
    """)
    for t in range(NT):
        epi_tile("T", t)
        b = ACC+16*t
        for i in range(8):
            a(f"v_pk_mul_f32 {v(b+2*i,2)}, {v(b+2*i,2)}, {v(RS,2)} op_sel_hi:[1,0]")
        for i in range(16):
            a(f"v_max_f32 v{b+i}, 0, v{b+i}")
        for i in range(8):
            a(f"v_pk_mul_f32 {v(b+2*i,2)}, {v(b+2*i,2)}, {v(b+2*i,2)}")
        cvt(t)
        a(f"buffer_store_dwordx4 {v(b,4)}, v4, s[36:39], s43 offen {SC}")
        a(f"buffer_store_dwordx4 {v(b+4,4)}, v4, s[36:39], s43 offen offset:1024 {SC}")
        a(f"s_add_u32 s43, s43, 2048")
    a("s_branch L1_done")
    a.label("L1_compV")
    compute("V")
    epi_start("V")
    a(f"""
    s_lshl_b32 s42, s16, 2
    s_add_u32 s42, s42, s23          ; tb
    s_mul_i32 s43, s42, 1280
    s_add_u32 s43, s43, {WS_V}
    s_sub_u32 s44, s18, 40
    s_lshl_b32 s44, s44, 5
    v_add_u32 v8, s44, v2            ; col
    v_mul_u32_u24 v9, 320, v3        ; h*320
    s_mov_b32 s45, {81920 - 320}
    """)
    for t in range(NT):
        epi_tile("V", t)
        b = ACC+16*t
        a(f"""
        v_mul_u32_u24 v10, 3277, v8
        v_lshrrev_b32 v10, 16, v10       ; head
        v_lshl_add_u32 v11, v8, 4, v9    ; col*16 + h*320
        v_mad_u32_u24 v{4+(t&1)}, v10, s45, v11  ; + head*(81920-320)
        v_add_u32 v8, 32, v8
        """)
        for i in range(8):
            a(f"v_pk_mul_f32 {v(b+2*i,2)}, {v(b+2*i,2)}, {v(RS+2*i,2)}")
        cvt(t)
        a(f"buffer_store_dwordx4 {v(b,4)}, v{4+(t&1)}, s[36:39], s43 offen {SC}")
        a(f"buffer_store_dwordx4 {v(b+4,4)}, v{4+(t&1)}, s[36:39], s43 offen offset:640 {SC}")
    a.label("L1_done")
    st_.stamp(6)
    fin()

    a.label("L1_loader")
    VX = 12; VW = 14
    XF = 24; WF = 40; SUM = 70; SQ = 72; CS = 74; ONE = 82; VP = 92
    a(f"""
    s_setprio 3
    v_lshrrev_b32 v86, 3, v1
    v_mul_u32_u24 v86, 1280, v86
    v_and_b32 v87, 7, v1
    v_lshrrev_b32 v88, 4, v1
    v_xor_b32 v87, v87, v88
    v_lshl_add_u32 v{VX}, v87, 4, v86
    v_xor_b32 v{VX+1}, 64, v{VX}
    s_lshl_b32 s40, s16, 2
    s_add_u32 s40, s40, s23
    s_mul_i32 s40, s40, {32*1280}
    s_lshl_b32 s41, s23, 4
    s_mul_i32 s41, s41, s22
    s_lshl_b32 s42, s18, 6
    s_add_u32 s41, s41, s42
    s_lshl_b32 s42, s22, 6
    s_lshl_b32 s43, s23, 12
    s_mul_i32 s44, s23, {16*WROW}
    s_add_u32 s44, s44, {WBASE}
    s_cmp_eq_u32 s19, 1
    s_cselect_b32 s45, 24, 28
    v_mov_b32 v89, 0x80000000
    """)
    for j in range(7):
        for q in range(j*64, j*64+64):
            assert (q*2341) >> 16 == q//28
        a(f"""
        v_add_u32 v86, {j*64}, v1
        v_mul_u32_u24 v87, 2341, v86
        v_lshrrev_b32 v87, 16, v87
        v_mul_u32_u24 v88, 28, v87
        v_sub_u32 v86, v86, v88
        v_mul_lo_u32 v87, v87, s22
        v_cmp_gt_u32 vcc, s45, v86
        v_lshl_add_u32 v87, v86, 4, v87
        s_nop 0
        v_cndmask_b32 v{VW+j}, v89, v87, vcc
        """)
    a(f"""
    s_cmp_eq_u32 s21, 2
    s_waitcnt lgkmcnt(0)
    s_cselect_b32 s28, s8, s6
    s_cselect_b32 s29, s9, s7
    s_and_b32 s29, s29, 0xffff
    s_mov_b32 s31, 0x20000
    """)
    a.srd(24, "s4", "s5", 2048*1280)
    def dmas(c):
        st = c % 3
        r = []
        for j in range(4):
            r.append(f"s_add_u32 m0, s43, {st*XST + j*1024}\ns_add_u32 s46, s40, {j*8*1280 + c*128}\nbuffer_load_dwordx4 v{VX+(j&1)}, s[24:27], s46 offen lds")
        for j in range(7):
            r.append(f"s_add_u32 m0, s44, {st*WST + j*1024}\ns_nop 0\nbuffer_load_dwordx4 v{VW+j}, s[28:31], s41 offen lds" + ("\ns_add_u32 s41, s41, s42" if j == 6 else ""))
        return r
    for d in dmas(0) + dmas(1): a(d)
    a.srd(36, "s12", "s13", WS_END)
    a(f"""
    s_mul_i32 s46, s23, {16*WROW}
    v_add_u32 v8, s46, v8
    v_add_u32 v9, {WST}, v8
    v_add_u32 v10, {2*WST}, v8
    v_mov_b32 v{ONE}, 0x3f803f80
    s_cmp_lt_u32 s2, 96
    s_cselect_b32 s32, s50, s48
    s_cselect_b32 s33, s51, s49
    s_mov_b32 s34, {640*1280}
    s_cselect_b32 s34, {1536*1280}, s34
    s_and_b32 s33, s33, 0xffff
    s_mov_b32 s35, 0x20000
    s_lshl_b32 s52, s2, 4
    s_sub_u32 s53, s2, 96
    s_mul_i32 s53, s53, 20
    s_cmp_lt_u32 s2, 96
    s_cselect_b32 s52, s52, s53
    s_sub_u32 s53, s2, 128
    s_mul_i32 s53, s53, 80
    s_add_u32 s53, s53, 16
    s_cmp_lt_u32 s2, 128
    s_cselect_b32 s52, s52, s53
    s_cselect_b32 s53, 4, 40
    s_cselect_b32 s54, 8, 20
    s_mul_i32 s52, s52, 1280
    s_mul_i32 s47, s23, 320
    s_add_u32 s52, s52, s47
    s_cmp_lt_u32 s2, 136
    s_cselect_b32 s34, s34, 0
    """)
    for j in range(5):
        a(f"""
        v_add_u32 v86, {j*64}, v1
        v_mul_u32_u24 v87, 3277, v86
        v_lshrrev_b32 v87, 16, v87
        v_mul_u32_u24 v88, 20, v87
        v_sub_u32 v86, v86, v88           ; piece
        v_and_b32 v88, 3, v87
        v_bfe_u32 v90, v87, 2, 1
        v_mad_u32_u24 v88, v90, s53, v88
        v_lshrrev_b32 v90, 3, v87
        v_mad_u32_u24 v88, v90, s54, v88
        v_mul_u32_u24 v88, 1280, v88
        v_lshl_add_u32 v{VP+j}, v86, 4, v88
        """)
    for i in range(SUM, CS+NT):
        a(f"v_mov_b32 v{i}, 0")
    st_.stamp(2)
    a("s_waitcnt vmcnt(11)")
    st_.stamp(3)
    a("s_barrier")
    PKL = WBASE + WST
    for c in range(NCH):
        st = c % 3
        if c+2 < NCH: dm = dmas(c+2)
        elif c == 8:
            dm = [f"s_add_u32 m0, s44, {WST + j*1024}\ns_nop 0\nbuffer_load_dwordx4 v{VP+j}, s[32:35], s52 offen lds" for j in range(5)]
        else: dm = []
        def D():
            if dm: a(dm.pop(0))
        D()
        for t in range(NT):
            a(f"ds_read_b64_tr_b16 {v(WF+4*t,2)}, v{8+st} offset:{t*64}")
            a(f"ds_read_b64_tr_b16 {v(WF+4*t+2,2)}, v{8+st} offset:{t*64+4*WROW}")
            if t == 3: D()
        D()
        a("s_waitcnt lgkmcnt(0)")
        for ks in range(4):
            a(f"ds_read_b128 {v(XF+4*ks,4)}, v{4+ks} offset:{st*XST}")
        for i in range(4):
            for t in range(NT):
                a(f"v_dot2c_f32_bf16 v{CS+t}, v{WF+4*t+i}, v{ONE}")
            D()
        if c == NCH-1:
            a(f"s_lshl_b32 s46, s23, 2\ns_add_u32 s46, s46, {CSP}")
            a(f"v_lshl_add_u32 v86, v1, 4, s46")
        a("s_waitcnt lgkmcnt(0)")
        if c == NCH-1:
            for t in range(NT):
                a(f"ds_write_b32 v86, v{CS+t} offset:{t*1024}")
        for i in range(16):
            a(f"v_dot2c_f32_bf16 v{SUM+(i&1)}, v{XF+i}, v{ONE}")
            a(f"v_dot2c_f32_bf16 v{SQ+(i&1)}, v{XF+i}, v{XF+i}")
            if i % 4 == 3: D()
        assert not dm
        if c < NCH-1:
            n = 11 if c+2 < NCH else 5
            if c in (0, 4): st_.stamp(4 + c//2)
            a(f"s_waitcnt vmcnt({n})")
            if c in (0, 4): st_.stamp(5 + c//2)
            a("s_barrier")
    a(f"""
    s_mov_b32 s47, {hx(f32(1.0/640))}
    s_nop 1
    v_add_f32 v{SUM}, v{SUM}, v{SUM+1}
    v_add_f32 v{SQ}, v{SQ}, v{SQ+1}
    v_mov_b32 v{SUM+1}, v{SUM}
    v_mov_b32 v{SQ+1}, v{SQ}
    s_nop 1
    v_permlane32_swap_b32 v{SUM}, v{SUM+1}
    v_permlane32_swap_b32 v{SQ}, v{SQ+1}
    s_nop 1
    v_add_f32 v{SUM}, v{SUM}, v{SUM+1}
    v_add_f32 v{SQ}, v{SQ}, v{SQ+1}
    v_mul_f32 v{SUM}, s47, v{SUM}              ; mean
    v_mul_f32 v{SQ}, s47, v{SQ}
    v_fma_f32 v{SQ}, -v{SUM}, v{SUM}, v{SQ}    ; var
    v_max_f32 v{SQ}, 0, v{SQ}
    v_cvt_pk_bf16_f32 v40, -v{SUM}, -v{SUM}    ; (-m,-m)
    v_cvt_pk_bf16_f32 v{SQ}, v{SQ}, v{SQ}
    v_and_b32 v{SQ}, 0xffff0000, v{SQ}
    v_add_f32 v{SQ}, {hx(f32(1e-5))}, v{SQ}
    v_cvt_pk_bf16_f32 v{SQ}, v{SQ}, v{SQ}
    v_and_b32 v{SQ}, 0xffff0000, v{SQ}
    v_sqrt_f32 v{SQ}, v{SQ}
    s_lshl_b32 s46, s23, 9
    s_add_u32 s46, s46, {XSF}
    v_cvt_pk_bf16_f32 v41, v{SQ}, 0            ; (sd, 0)
    v_lshl_add_u32 v87, v1, 3, s46
    v_lshlrev_b32 v42, 16, v41
    v_rcp_f32 v42, v42
    s_lshl_b32 s46, s23, 7
    s_add_u32 s46, s46, {RSTD}
    v_lshl_add_u32 v88, v2, 2, s46
    ds_write_b64 v87, v[40:41]
    ds_write_b32 v88, v42
    s_waitcnt lgkmcnt(0)
    s_barrier
    s_setprio 0
    s_cmp_ge_u32 s2, 136
    s_cbranch_scc1 L1_ldone
    v_bfe_u32 v86, v1, 2, 2
    v_lshl_add_u32 v86, v3, 2, v86     ; 4h + j
    v_mul_u32_u24 v86, 320, v86
    v_bfe_u32 v87, v1, 4, 1
    v_lshl_add_u32 v86, v87, 5, v86
    v_and_b32 v87, 3, v1
    v_lshl_add_u32 v86, v87, 3, v86
    s_add_u32 s46, s44, {WST}
    v_add_u32 v86, s46, v86
    v_lshlrev_b32 v87, 4, v1
    s_mul_i32 s46, s2, 20
    s_mul_i32 s47, s23, 5
    s_add_u32 s46, s46, s47
    s_lshl_b32 s46, s46, 10
    s_add_u32 s46, s46, {WS_WP}
    s_add_u32 s47, s46, 4096
    s_waitcnt vmcnt(0)
    """)
    for t in range(5):
        a(f"ds_read_b64_tr_b16 {v(WF+4*t,2)}, v86 offset:{t*64}")
        a(f"ds_read_b64_tr_b16 {v(WF+4*t+2,2)}, v86 offset:{t*64+8*320}")
    for t in range(5):
        a(f"s_waitcnt lgkmcnt({8-2*t})")
        if t < 4: a(f"buffer_store_dwordx4 {v(WF+4*t,4)}, v87, s[36:39], s46 offen offset:{t*1024} {SC}")
        else: a(f"buffer_store_dwordx4 {v(WF+4*t,4)}, v87, s[36:39], s47 offen {SC}")
    a.label("L1_ldone")
    if STAMP: fin()
    a.label("L1_exit")
    a("s_endpgm")
    return a.text(), kernel_desc(name, 224), f"; @launch kernel={name} grid=(256,1,1) block=(512,1,1) lds={K1_LDS}"
```

```python
from asmlib import *
import numpy as np

KVS = 10240
K2_LDS = 16*KVS
RED = 1024

def decode_f(flat):
    f = flat.reshape(64, 4, 5, 2, 2, 32, 8)
    out = np.zeros((64, 32, 4, 160), np.float32)
    for t in range(5):
        for q in range(2):
            for h in range(2):
                for j in range(8):
                    col = 32*t + 16*q + (j & 3) + 8*(j >> 2) + 4*h
                    out[:, :, :, col] = f[:, :, t, q, h, :, j].transpose(0, 2, 1)
    return out.reshape(2048, 640)

def tile_ids(a):
    a("""
    s_lshr_b32 s18, s14, 1
    s_lshl_b32 s18, s18, 4
    s_and_b32 s19, s15, 15
    s_add_u32 s18, s18, s19          ; ftb
    s_and_b32 s19, s14, 1
    s_lshl_b32 s19, s19, 1
    s_lshr_b32 s21, s15, 4
    s_add_u32 s19, s19, s21          ; fcb
    """)

def gen_k2(name="k2_kernel"):
    a = Asm()
    a(kernel_head(name))
    st_ = Stamps(a, 1)
    st_.real(0); st_.stamp(1)
    def fin():
        st_.dump(8, "s12", "s13", "s20")
        a("s_endpgm")
    a(f"""
    s_cmp_ge_u32 s2, 256
    s_cbranch_scc1 L2_exit
    s_load_dwordx2 s[12:13], s[0:1], 80
    v_lshrrev_b32 v2, 6, v0
    v_and_b32 v1, 63, v0
    v_readfirstlane_b32 s20, v2
    s_and_b32 s14, s2, 7             ; j
    s_lshr_b32 s15, s2, 3            ; i
    s_lshl_b32 s16, s14, 2
    s_and_b32 s17, s15, 3
    s_add_u32 s16, s16, s17          ; head
    s_lshr_b32 s17, s15, 2           ; qb
    v_and_b32 v2, 31, v1
    v_lshrrev_b32 v3, 5, v1          ; h
    s_cmp_ge_u32 s20, 8
    s_cbranch_scc1 L2_aux
    """)
    aK1, aK2, aV, IDX = 4, 5, 6, 7
    Q1 = 8; Q2 = 12; K2 = 14; K1 = 16
    V = [[20+8*p, 24+8*p] for p in range(4)]
    S = [52, 68]; O = 84; N = 100; T0 = 116
    VMASK = 0x000fffff
    a(f"""
    s_lshl_b32 s40, s17, 3
    s_add_u32 s40, s40, s20          ; tbq
    s_mul_i32 s41, s16, {5*16384}
    s_lshl_b32 s42, s40, 8
    s_add_u32 s41, s41, s42
    s_add_u32 s42, s41, 16384
    s_add_u32 s43, s41, 65536
    v_lshlrev_b32 v{T0}, 3, v2
    v_lshl_add_u32 v{T0+1}, v3, 15, v{T0}   ; 2h planes
    v_lshl_add_u32 v{T0+2}, v3, 31, v{T0}
    s_waitcnt lgkmcnt(0)
    """)
    a.srd(28, "s12", "s13", WS_END)
    a(f"buffer_load_dwordx2 {v(Q1,2)}, v{T0+1}, s[28:31], s41 offen")
    a(f"buffer_load_dwordx2 {v(Q1+2,2)}, v{T0+1}, s[28:31], s42 offen")
    a(f"buffer_load_dwordx2 {v(Q2,2)}, v{T0+2}, s[28:31], s43 offen")
    def sigma8():
        a(f"""
        v_and_b32 v{T0}, 19, v2
        v_bfe_u32 v{T0+1}, v2, 2, 1
        v_lshl_add_u32 v{T0}, v{T0+1}, 3, v{T0}
        v_bfe_u32 v{T0+1}, v2, 3, 1
        v_lshl_add_u32 v{T0}, v{T0+1}, 2, v{T0}   ; sigma(row)
        v_lshlrev_b32 v{T0}, 3, v{T0}
        v_mul_u32_u24 v{T0+1}, 20, v3
        v_add_u32 v{T0+1}, v{T0+1}, v2
        v_lshlrev_b32 v{T0+1}, 4, v{T0+1}
        """)
    sigma8()
    a(f"""
    v_lshl_add_u32 v{aK1}, v3, 11, v{T0}
    v_add_u32 v{aK2}, 4096, v{T0}
    v_add_u32 v{aV}, 5120, v{T0+1}
    v_mov_b32 v{IDX}, 0xdddddddd
    v_mov_b32 v{T0}, 0x3f803f80
    v_cmp_eq_u32 vcc, 20, v2
    s_mov_b32 s46, {hx(VMASK)}
    s_mov_b32 s47, {hx(VMASK)}
    v_cndmask_b32 v20, 0, v{T0}, vcc
    """)
    for r in range(21, 52): a(f"v_mov_b32 v{r}, v20")
    for r in list(range(O, O+16)) + list(range(S[1]+8, S[1]+16)):
        a(f"v_mov_b32 v{r}, 0")
    def block(t):
        ko = (t >> 2)*KVS + (t & 3)*256
        vo = (t >> 2)*KVS + (t & 3)*1280
        p = t & 3
        return ["s_mov_b64 exec, s[46:47]",
                f"ds_read_b128 {v(V[p][0],4)}, v{aV} offset:{vo}",
                f"ds_read_b128 {v(V[p][1],4)}, v{aV} offset:{vo+640}",
                "s_mov_b64 exec, -1",
                f"ds_read_b64 {v(K1,2)}, v{aK1} offset:{ko}",
                f"ds_read_b64 {v(K1+2,2)}, v{aK1} offset:{ko+1024}",
                f"ds_read_b64 {v(K2,2)}, v{aK2} offset:{ko}"]
    def M1(X, c): return f"v_mfma_f32_32x32x16_bf16 {v(S[X],16)}, {v(K1,4)}, {v(Q1,4)}, {c}"
    def M2(X): return f"v_mfma_f32_32x32x8_bf16 {v(S[X],16)}, {v(K2,2)}, {v(Q2,2)}, {v(S[X],16)}"
    def SM(X, p, f): return f"v_smfmac_f32_32x32x32_bf16 {v(O,16)}, {v(V[p][f],4)}, {v(S[X]+8*f,8)}, v{IDX}"
    def rowmax():
        b = S[0]
        a(f"v_max3_f32 v{N}, v{b}, v{b+1}, v{b+2}")
        for i in range(3, 15, 2):
            a(f"v_max3_f32 v{N}, v{N}, v{b+i}, v{b+i+1}")
        a(f"v_max_f32 v{N}, v{N}, v{b+15}")
    def bcast_neg():
        a(f"v_mov_b32 v{N+1}, v{N}\ns_nop 1\nv_permlane32_swap_b32 v{N}, v{N+1}\ns_nop 1")
        a(f"v_max_f32 v{N}, v{N}, v{N+1}\nv_sub_f32 v{N}, 0, v{N}")
        for i in range(1, 16): a(f"v_mov_b32 v{N+i}, v{N}")
    st_.stamp(2)
    a("s_barrier")
    st_.stamp(3)
    for r in block(0): a(r)
    a("s_waitcnt vmcnt(0) lgkmcnt(0)")
    a(M1(0, "0")); a(M2(0))
    a("s_nop 11")
    rowmax(); bcast_neg()
    for i in range(16): a(f"v_add_f32 v{S[0]+i}, v{S[0]+i}, v{N}")
    a("s_mov_b32 s45, 0")
    st_.stamp(4)
    a(".p2align 3")
    a.label("L2_loop")
    for t in range(16):
        X = t & 1
        e = [f"v_exp_f32 v{S[X]+i}, v{S[X]+i}" for i in range(16)]
        if t == 3:
            a("s_cmp_lg_u32 s45, 0\ns_cbranch_scc1 L2_nb3\ns_barrier")
            a.label("L2_nb3")
        if t == 15:
            a("s_cmp_gt_u32 s45, 1\ns_cbranch_scc1 L2_nb15\ns_barrier")
            a.label("L2_nb15")
            a("s_add_u32 s45, s45, 1\ns_cmp_eq_u32 s45, 4\ns_cbranch_scc1 L2_nord")
        for r in block(t+1): a(r)
        if t == 15: a.label("L2_nord")
        seq = [e[0], SM(X ^ 1, (t-1) & 3, 1), "s_setprio 1", "s_waitcnt lgkmcnt(0)"] + e[1:5]
        seq += [M1(X ^ 1, v(N,16)), "s_setprio 2"] + e[5:9] + [M2(X ^ 1)] + e[9:13] + [SM(X, t & 3, 0)] + e[13:16]
        if t == 15:
            seq += [f"v_add_u32 v{r}, {4*KVS}, v{r}" for r in (aK1, aK2, aV)]
        seq += ["s_setprio 0"]
        for x in seq: a(x)
    a("s_cbranch_scc0 L2_loop")
    st_.stamp(5)
    a(SM(1, 3, 1))
    a(f"""
    s_lshl_b32 s42, s40, 5
    s_add_u32 s42, s42, s16
    s_lshl_b32 s42, s42, 10
    s_add_u32 s42, s42, {WS_OM}
    s_lshl_b32 s43, s40, 4
    s_lshr_b32 s44, s16, 1
    s_add_u32 s43, s43, s44
    s_lshl_b32 s43, s43, 9
    s_and_b32 s44, s16, 1
    s_lshl_b32 s44, s44, 3
    s_add_u32 s43, s43, s44
    s_add_u32 s43, s43, {WS_OT}
    s_mov_b32 s48, {hx(f32(2.0**40))}
    """)
    def getl():
        a(f"v_mov_b32 v{T0}, v{O+8}\nv_mov_b32 v{T0+1}, v{O+8}\ns_nop 1\nv_permlane32_swap_b32 v{T0}, v{T0+1}\ns_nop 1")
    getl()
    a(f"v_cmp_nlt_f32 vcc, v{T0+1}, s48")
    a(f"s_nop 4\ns_cbranch_vccz L2_ok")
    a.c("fallback: true row max over all keys, then recompute this q tile (K/V straight from memory)")
    sigma8()
    a(f"""
    s_mul_i32 s50, s16, {5*16384}
    s_add_u32 s50, s50, {160*16384}
    v_lshl_add_u32 v{aK1}, v3, 15, v{T0}
    v_add_u32 v{T0+3}, 16384, v{aK1}
    v_add_u32 v{aK2}, 65536, v{T0}
    v_mov_b32 v{aV}, v{T0+1}
    v_mov_b32 v{T0+2}, 0xff800000
    s_mov_b32 s51, s50
    s_mov_b32 s52, 64
    """)
    def kload():
        a(f"buffer_load_dwordx2 {v(K1,2)}, v{aK1}, s[28:31], s51 offen")
        a(f"buffer_load_dwordx2 {v(K1+2,2)}, v{T0+3}, s[28:31], s51 offen")
        a(f"buffer_load_dwordx2 {v(K2,2)}, v{aK2}, s[28:31], s51 offen")
    a.label("L2_fb1")
    kload()
    a("s_waitcnt vmcnt(0)")
    a(M1(0, "0")); a(M2(0)); a("s_nop 11")
    rowmax()
    a(f"v_max_f32 v{T0+2}, v{T0+2}, v{N}")
    a(f"s_add_u32 s51, s51, 256\ns_sub_u32 s52, s52, 1\ns_cmp_lg_u32 s52, 0\ns_cbranch_scc1 L2_fb1")
    a(f"v_mov_b32 v{N}, v{T0+2}")
    bcast_neg()
    for i in range(16): a(f"v_mov_b32 v{O+i}, 0")
    a(f"""
    s_mov_b32 s51, s50
    s_mul_i32 s53, s16, 81920
    s_add_u32 s53, s53, {WS_V}
    s_mov_b32 s52, 64
    """)
    a.label("L2_fb2")
    kload()
    a("s_mov_b64 exec, s[46:47]")
    a(f"buffer_load_dwordx4 {v(V[0][0],4)}, v{aV}, s[28:31], s53 offen")
    a(f"buffer_load_dwordx4 {v(V[0][1],4)}, v{aV}, s[28:31], s53 offen offset:640")
    a("s_mov_b64 exec, -1")
    a("s_waitcnt vmcnt(0)")
    a(M1(0, v(N,16))); a(M2(0)); a("s_nop 11")
    for i in range(16): a(f"v_exp_f32 v{S[0]+i}, v{S[0]+i}")
    a("s_nop 1")
    a(SM(0, 0, 0)); a(SM(0, 0, 1))
    a(f"s_add_u32 s51, s51, 256\ns_add_u32 s53, s53, 1280\ns_sub_u32 s52, s52, 1\ns_cmp_lg_u32 s52, 0\ns_cbranch_scc1 L2_fb2")
    a("s_nop 11")
    getl()
    a.label("L2_ok")
    a(f"v_rcp_f32 v{T0}, v{T0+1}")
    a(f"v_lshlrev_b32 v4, 4, v1\nv_lshlrev_b32 v5, 4, v2\nv_lshl_add_u32 v5, v3, 31, v5")
    for i in range(6):
        a(f"v_pk_mul_f32 {v(O+2*i,2)}, {v(O+2*i,2)}, {v(T0,2)} op_sel_hi:[1,0]")
    for i in range(6):
        a(f"v_cvt_pk_bf16_f32 v{O+i}, v{O+2*i}, v{O+2*i+1}")
    a(f"buffer_store_dwordx4 {v(O,4)}, v4, s[28:31], s42 offen")
    a(f"buffer_store_dwordx2 {v(O+4,2)}, v5, s[28:31], s43 offen")
    st_.stamp(6)
    fin()

    a.label("L2_aux")
    VK = 4; VL = 7; SETS = [16, 40, 64]; ACC = 88
    tile_ids(a)
    a(f"""
    s_and_b32 s23, s20, 3             ; w
    s_and_b32 s40, s23, 1
    s_mul_i32 s40, s40, 2560
    v_lshlrev_b32 v{VL}, 4, v1
    s_mul_i32 s41, s16, {5*16384}
    s_add_u32 s41, s41, {160*16384}
    s_mul_i32 s42, s16, 81920
    s_add_u32 s42, s42, {WS_V}
    s_movk_i32 s43, 5120
    s_mov_b32 s44, 0
    s_cmp_lt_u32 s23, 2
    s_cselect_b32 s41, s41, s42
    s_cselect_b32 s43, 1024, s43
    s_cselect_b32 s44, {16384-1024}, s44
    s_mul_i32 s42, s23, 2560
    """)
    for j in range(3):
        a(f"""
        s_add_u32 s45, s40, {j*1024}
        v_add_u32 v8, s45, v{VL}
        v_lshrrev_b32 v9, 10, v8
        v_mad_u32_u24 v{VK+j}, v9, s44, v8
        """)
    a(f"""
    s_mul_i32 s46, s23, {24*20}
    s_mul_i32 s47, s19, 5
    s_add_u32 s46, s46, s47
    s_lshl_b32 s46, s46, 10
    s_add_u32 s46, s46, {WS_WP}
    s_mul_i32 s47, s18, 96
    s_mul_i32 s48, s23, 24
    s_add_u32 s47, s47, s48
    s_lshl_b32 s47, s47, 10
    s_add_u32 s47, s47, {WS_H}
    s_waitcnt lgkmcnt(0)
    """)
    a.srd(28, "s12", "s13", WS_END)
    vm = VmTrack(a)
    def issue_kv(k):
        for j in range(3):
            if j == 2: a("s_mov_b32 exec_hi, 0")
            a(f"s_add_u32 m0, s42, {k*KVS + j*1024}\ns_nop 0")
            vm.op(f"buffer_load_dwordx4 v{VK+j}, s[28:31], s41 offen lds", ("kv", k))
        a("s_mov_b32 exec_hi, -1\ns_add_u32 s41, s41, s43")
    def issue_f(i):
        b = SETS[i % 3]
        vm.op(f"buffer_load_dwordx4 {v(b,4)}, v{VL}, s[28:31], s47 offen")
        for t in range(4):
            vm.op(f"buffer_load_dwordx4 {v(b+4+4*t,4)}, v{VL}, s[28:31], s46 offen offset:{t*1024}")
        a("s_add_u32 s48, s46, 4096")
        vm.op(f"buffer_load_dwordx4 {v(b+20,4)}, v{VL}, s[28:31], s48 offen", ("f", i))
        a(f"s_add_u32 s46, s46, {20*1024}\ns_add_u32 s47, s47, 1024")
    issue_kv(0); issue_kv(1)
    st_.stamp(2)
    vm.wait(("kv", 0))
    st_.stamp(3)
    a("s_barrier")
    issue_kv(2); issue_kv(3)
    issue_f(0)
    vm.wait(("kv", 3))
    a("s_barrier")
    issue_f(1); issue_f(2)
    kvplan = {0: [4, 5], 1: [6, 7], 2: [8], 3: [9], 4: [10], 5: [11], 6: [12], 7: [13], 8: [14, 15]}
    for i in range(24):
        vm.wait(("f", i))
        b = SETS[i % 3]
        for t in range(5):
            c = "0" if i == 0 else v(ACC+16*t,16)
            a(f"v_mfma_f32_32x32x16_bf16 {v(ACC+16*t,16)}, {v(b+4+4*t,4)}, {v(b,4)}, {c}")
        for k in kvplan.get(i, []): issue_kv(k)
        if i+3 < 24: issue_f(i+3)
        if i == 3:
            vm.wait(("kv", 7))
            st_.stamp(4)
            a("s_barrier")
            a("v_mov_b32 v8, 0\nds_write_b32 v8, v8")
        if i == 10:
            vm.wait(("kv", 15))
            st_.stamp(5)
            a("s_waitcnt lgkmcnt(0)\ns_barrier")
    st_.stamp(6)
    a(f"""
    s_lshl_b32 s41, s18, 2
    s_add_u32 s41, s41, s19
    s_mul_i32 s41, s41, 10240
    s_lshr_b32 s42, s23, 1
    s_lshl_b32 s42, s42, 10
    s_add_u32 s41, s41, s42
    s_and_b32 s42, s23, 1
    s_lshl_b32 s42, s42, 3
    s_add_u32 s41, s41, s42
    s_add_u32 s41, s41, {WS_F}
    s_add_u32 s42, s41, 4096
    s_add_u32 s43, s41, 8192
    v_mov_b32 v8, 0
    v_mov_b32 v9, 1
    """)
    for w in range(3):
        a(f"s_cmp_eq_u32 s23, {w}\ns_cbranch_scc1 L2_red{w}")
    for w in (3, 0, 1, 2):
        if w != 3: a.label(f"L2_red{w}")
        for g in range(4):
            if g == w: continue
            sl = w if w < g else w-1
            for t in range(5):
                a(f"ds_write_b128 v{VL}, {v(ACC+16*t+4*g,4)} offset:{RED + ((g*3+sl)*5+t)*1024}")
        a("s_waitcnt lgkmcnt(0)")
        a("s_mov_b64 exec, 1\nds_add_u32 v8, v9\ns_mov_b64 exec, -1")
        a.label(f"L2_poll{w}")
        a(f"""
        s_sleep 1
        ds_read_b32 v10, v8
        s_waitcnt lgkmcnt(0)
        v_readfirstlane_b32 s44, v10
        s_cmp_lt_u32 s44, 4
        s_cbranch_scc1 L2_poll{w}
        """)
        for t in range(5):
            for sl in range(3):
                a(f"ds_read_b128 {v(16+(t*3+sl)*4,4)}, v{VL} offset:{RED + ((w*3+sl)*5+t)*1024}")
        for t in range(5):
            a(f"s_waitcnt lgkmcnt({12-3*t})")
            o = ACC+16*t+4*w; b = 16+t*12
            for hh in range(2):
                a(f"v_pk_add_f32 {v(o+2*hh,2)}, {v(o+2*hh,2)}, {v(b+2*hh,2)}")
                a(f"v_pk_add_f32 {v(b+4+2*hh,2)}, {v(b+4+2*hh,2)}, {v(b+8+2*hh,2)}")
            for hh in range(2):
                a(f"v_pk_add_f32 {v(o+2*hh,2)}, {v(o+2*hh,2)}, {v(b+4+2*hh,2)}")
            a(f"v_cvt_pk_bf16_f32 v{o}, v{o}, v{o+1}\nv_cvt_pk_bf16_f32 v{o+1}, v{o+2}, v{o+3}")
            a(f"buffer_store_dwordx2 {v(o,2)}, v{VL}, s[28:31], s{41+t//2} offen offset:{(t&1)*2048}")
        st_.stamp(7)
        fin()
    a.label("L2_exit")
    a("s_endpgm")
    return a.text(), kernel_desc(name, 168), f"; @launch kernel={name} grid=(256,1,1) block=(768,1,1) lds={K2_LDS}"
```

```python
from asmlib import *
from k2 import tile_ids
import math
TRS = 80
TRB = 40960
K3_LDS = TRB + 5*32*TRS

def gen_k3(name="k3_kernel"):
    a = Asm()
    a(kernel_head(name))
    st_ = Stamps(a, 2)
    st_.real(0); st_.stamp(1)
    a(f"""
    s_cmp_ge_u32 s2, 256
    s_cbranch_scc1 L3_exit
    s_load_dwordx2 s[4:5], s[0:1], 0
    s_load_dwordx4 s[8:11], s[0:1], 56
    s_load_dwordx2 s[12:13], s[0:1], 80
    v_lshrrev_b32 v2, 6, v0
    v_and_b32 v1, 63, v0
    v_readfirstlane_b32 s20, v2
    s_and_b32 s14, s2, 7
    s_lshr_b32 s15, s2, 3
    """)
    tile_ids(a)
    WF = 64; ACC = 16; OF = [8, 12]; FR = 32; B2 = 40; XR = 48; G = 224
    a(f"""
    v_and_b32 v2, 31, v1
    v_lshrrev_b32 v3, 5, v1
    v_lshlrev_b32 v4, 4, v1
    s_mul_i32 s22, s19, 5
    s_add_u32 s22, s22, s20
    s_lshl_b32 s40, s18, 15
    s_lshl_b32 s41, s20, 13
    s_add_u32 s40, s40, s41
    s_add_u32 s40, s40, {WS_OM}
    s_lshl_b32 s42, s18, 13
    s_add_u32 s42, s42, {WS_OT}
    s_cmp_eq_u32 s20, 4
    s_cselect_b32 s40, s42, s40
    s_add_u32 s42, s40, 4096
    s_lshl_b32 s43, s22, 10
    s_add_u32 s43, s43, {WS_WP + 96*20*1024}
    s_lshl_b32 s44, s18, 2
    s_add_u32 s44, s44, s19
    s_mul_i32 s44, s44, 5
    s_add_u32 s44, s44, s20
    s_lshl_b32 s44, s44, 11
    s_add_u32 s44, s44, {WS_F}         ; f soffset
    s_lshl_b32 s45, s22, 6
    s_mul_i32 s46, s18, {32*1280}
    s_add_u32 s46, s46, s45
    s_add_u32 s47, s46, {16*1280}
    v_lshlrev_b32 v5, 3, v3            ; b2 voffset
    v_lshrrev_b32 v6, 2, v1
    v_and_b32 v7, 3, v1
    v_lshlrev_b32 v7, 4, v7
    v_mul_u32_u24 v60, {TRS}, v6
    v_add_u32 v60, v60, v7
    v_mul_u32_u24 v6, 1280, v6
    v_add_u32 v6, v6, v7
    s_mul_i32 s48, s20, {32*TRS}
    s_add_u32 s48, s48, {TRB}
    v_add_u32 v60, s48, v60
    v_mul_u32_u24 v61, {TRS}, v2
    v_lshl_add_u32 v61, v3, 3, v61
    v_add_u32 v61, s48, v61
    s_waitcnt lgkmcnt(0)
    """)
    a.srd(28, "s12", "s13", WS_END)
    vm = VmTrack(a)
    for j in range(8):
        a(f"s_add_u32 m0, s41, {(j & 4)*1024}\ns_nop 0")
        vm.op(f"buffer_load_dwordx4 v4, s[28:31], s{40 if j < 4 else 42} offen offset:{(j & 3)*1024} lds", "o")
    a.srd(24, "s4", "s5", 2048*1280)
    a.srd(32, "s8", "s9", 1280)
    a.srd(36, "s10", "s11", 2048*1280)
    def wload(ks):
        vm.op(f"buffer_load_dwordx4 {v(WF+4*ks,4)}, v4, s[28:31], s43 offen", ("w", ks))
        a(f"s_add_u32 s43, s43, {20*1024}")
    for ks in range(4): wload(ks)
    vm.op(f"buffer_load_dwordx4 {v(FR,4)}, v4, s[28:31], s44 offen")
    vm.op(f"buffer_load_dwordx4 {v(FR+4,4)}, v4, s[28:31], s44 offen offset:1024")
    for g in range(4):
        vm.op(f"buffer_load_dwordx2 {v(B2+2*g,2)}, v5, s[32:35], s45 offen offset:{16*g}", "b2")
    for ks in range(4, 12): wload(ks)
    st_.stamp(2)
    vm.wait("o")
    a("s_barrier")
    st_.stamp(3)
    for ks in range(12, 40): wload(ks)
    vm.op(f"buffer_load_dwordx4 {v(XR,4)}, v6, s[24:27], s46 offen")
    vm.op(f"buffer_load_dwordx4 {v(XR+4,4)}, v6, s[24:27], s47 offen", "x")
    st_.stamp(4)
    a(f"ds_read_b128 {v(OF[0],4)}, v4")
    vm.wait("b2")
    gate = []
    for i in range(8):
        gate += [f"v_lshlrev_b32 v{G+2*i}, 16, v{FR+i}", f"v_and_b32 v{G+2*i+1}, 0xffff0000, v{FR+i}",
                 f"v_lshlrev_b32 v62, 16, v{B2+i}", f"v_and_b32 v63, 0xffff0000, v{B2+i}",
                 f"v_pk_add_f32 {v(G+2*i,2)}, {v(G+2*i,2)}, v[62:63]",
                 f"v_mul_f32 v62, s49, v{G+2*i}", f"v_mul_f32 v63, s49, v{G+2*i+1}",
                 "v_exp_f32 v62, v62", "v_exp_f32 v63, v63", "s_nop 0",
                 "v_add_f32 v62, 1.0, v62", "v_add_f32 v63, 1.0, v63",
                 "v_rcp_f32 v62, v62", "v_rcp_f32 v63, v63", "s_nop 0",
                 f"v_pk_mul_f32 {v(G+2*i,2)}, {v(G+2*i,2)}, v[62:63]"]
    a(f"s_mov_b32 s49, {hx(f32(-math.log2(math.e)))}")
    for ks in range(40):
        if ks+1 < 40:
            a(f"ds_read_b128 {v(OF[(ks+1)&1],4)}, v4 offset:{(ks+1)*1024}")
        k = vm.n - vm.tags[("w", ks)]
        a(f"s_waitcnt vmcnt({k}) lgkmcnt({1 if ks+1 < 40 else 0})")
        c = "0" if ks == 0 else v(ACC,16)
        a(f"v_mfma_f32_32x32x16_bf16 {v(ACC,16)}, {v(WF+4*ks,4)}, {v(OF[ks&1],4)}, {c}")
        for _ in range(4):
            if gate: a(gate.pop(0))
    assert not gate
    st_.stamp(5)
    a("s_nop 11")
    for i in range(8):
        a(f"v_pk_mul_f32 {v(ACC+2*i,2)}, {v(ACC+2*i,2)}, {v(G+2*i,2)}")
    for i in range(8):
        a(f"v_cvt_pk_bf16_f32 v{ACC+i}, v{ACC+2*i}, v{ACC+2*i+1}")
    for g in range(4):
        a(f"ds_write_b64 v61, {v(ACC+2*g,2)} offset:{16*g}")
    a("s_waitcnt lgkmcnt(0)")
    a(f"ds_read_b128 {v(FR,4)}, v60")
    a(f"ds_read_b128 {v(FR+4,4)}, v60 offset:{16*TRS}")
    a("s_waitcnt vmcnt(0)")
    for i in range(8):
        a(f"v_lshlrev_b32 v{G+2*i}, 16, v{XR+i}\nv_and_b32 v{G+2*i+1}, 0xffff0000, v{XR+i}")
    for hf in range(2):
        a(f"s_waitcnt lgkmcnt({1-hf})")
        for i in range(4*hf, 4*hf+4):
            a(f"v_lshlrev_b32 v62, 16, v{FR+i}\nv_and_b32 v63, 0xffff0000, v{FR+i}")
            a(f"v_pk_add_f32 v[62:63], v[62:63], {v(G+2*i,2)}")
            a(f"v_cvt_pk_bf16_f32 v{ACC+i}, v62, v63")
        a(f"buffer_store_dwordx4 {v(ACC+4*hf,4)}, v6, s[36:39], s{46+hf} offen")
    st_.stamp(6)
    st_.dump(8, "s12", "s13", "s20")
    a.label("L3_exit")
    a("s_endpgm")
    return a.text(), kernel_desc(name, 240), f"; @launch kernel={name} grid=(256,1,1) block=(320,1,1) lds={K3_LDS}"
```

```python
import sys
sys.path.insert(0, "gen")
NAME = "recurrent_scan__softmax_full_mha__dense_activation_squared_relu__prompt"
def build(parts, out):
    launches = "\n".join(p[2] for p in parts)
    s = launches + "\n" + '.amdgcn_target "amdgcn-amd-amdhsa--gfx950"\n.text\n'
    for p in parts: s += p[0]
    s += '.section .rodata,"a"\n'
    for p in parts: s += p[1]
    open(out, "w").write(s)
if __name__ == "__main__":
    from k1 import gen_k1
    parts = [gen_k1()]
    try:
        from k2 import gen_k2
        parts.append(gen_k2())
        from k3 import gen_k3
        parts.append(gen_k3())
    except ImportError:
        pass
    out = sys.argv[1] if len(sys.argv) > 1 else f"cdna_kernels/{NAME}.s"
    build(parts, out)
```

```python
import sys
sys.path.insert(0, "gen")
from build import build
from asmlib import *
from k1 import gen_k1
from k2 import gen_k2
from k3 import gen_k3
def empty(name, grid=256, block=256):
    return kernel_head(name) + "    s_endpgm\n", kernel_desc(name, 8), f"; @launch kernel={name} grid=({grid},1,1) block=({block},1,1) lds=0"
base = [gen_k1(), gen_k2(), gen_k3()]
e = empty("e_kernel")
build(base + [e] + [("", "", e[2])]*3, "x_post4.s")
build([e] + [("", "", e[2])]*3 + base, "x_pre4.s")
for i in range(3):
    l = list(base); l.insert(i+1, ("", "", base[i][2]))
    build(l, f"x_dup{i+1}.s")
```

```python
import sys, re
sys.path.insert(0, "gen")
from build import build
from asmlib import *
from k1 import gen_k1
from k2 import gen_k2
from k3 import gen_k3
def instrument(part, idx):
    code, desc, launch = part
    head_end = code.index(":\n", code.index(".type")) + 2
    pre = f"""    s_memrealtime s[90:91]
    s_memtime s[84:85]
    s_load_dwordx2 s[92:93], s[0:1], 72
    s_waitcnt lgkmcnt(0)
    s_sub_u32 s92, s92, {512*idx}
    s_subb_u32 s93, s93, 0
"""
    post = f"""    s_waitcnt vmcnt(0) lgkmcnt(0)
    s_memrealtime s[88:89]
    s_memtime s[86:87]
    s_waitcnt lgkmcnt(0)
    s_mov_b64 exec, 1
    v_mov_b32 v0, 0
    s_not_b32 s90, s90
    v_mov_b32 v1, s90
    global_atomic_umax v0, v1, s[92:93] offset:{16*idx}
    v_mov_b32 v1, s88
    global_atomic_umax v0, v1, s[92:93] offset:{16*idx+4}
    s_sub_u32 s86, s86, s84
    v_mov_b32 v1, s86
    global_atomic_umax v0, v1, s[92:93] offset:{16*idx+8}
    s_waitcnt vmcnt(0)
    s_endpgm
"""
    body = code[head_end:].replace("    s_endpgm\n", post)
    return code[:head_end] + pre + body, desc, launch
base = [gen_k1(), gen_k2(), gen_k3()]
build([instrument(p, i) for i, p in enumerate(base)], "x_dbg.s")
```

```python
import sys, re
sys.path.insert(0, "gen")
from build import build
from asmlib import *
from k1 import gen_k1
from k2 import gen_k2
from k3 import gen_k3
def instrument(part, idx):
    code, desc, launch = part
    head_end = code.index(":\n", code.index(".type")) + 2
    pre = f"""    s_memrealtime s[90:91]
    s_memtime s[84:85]
    s_load_dwordx2 s[92:93], s[0:1], 72
    s_waitcnt lgkmcnt(0)
    s_add_u32 s92, s92, {512*(2-idx)}
    s_addc_u32 s93, s93, 0
"""
    post = f"""    s_cmp_ge_u32 s2, 8
    s_cbranch_scc1 LX_end{idx}
    s_waitcnt vmcnt(0) lgkmcnt(0)
    s_memrealtime s[88:89]
    s_memtime s[86:87]
    s_waitcnt lgkmcnt(0)
    s_mov_b64 exec, 1
    v_mov_b32 v0, 0
    s_not_b32 s90, s90
    v_mov_b32 v1, s90
    global_atomic_umax v0, v1, s[92:93] offset:{16*idx}
    v_mov_b32 v1, s88
    global_atomic_umax v0, v1, s[92:93] offset:{16*idx+4}
    s_sub_u32 s86, s86, s84
    v_mov_b32 v1, s86
    global_atomic_umax v0, v1, s[92:93] offset:{16*idx+8}
    s_waitcnt vmcnt(0)
    s_endpgm
"""
    body = code[head_end:].replace("    s_endpgm\n", post)
    return code[:head_end] + pre + body + f"LX_end{idx}:\n    s_endpgm\n", desc, launch
base = [gen_k1(), gen_k2(), gen_k3()]
build([instrument(p, i) for i, p in enumerate(base)], "x_dbg.s")
```

```python
from asmlib import *
import math

NT = 7
XST = 16384
WROW = 448
WST = 64*WROW
WBASE = 3*XST
MISC = WBASE + 3*WST
CSP = MISC
XSF = CSP + 7*1024
RSTD = XSF + 4*512
K1_LDS = RSTD + 512
NCH = 10
QSCALE = 20**-0.5 * math.log2(math.e)

STARTS = [0,7,14,21,28,34,40,47,54, 0,7,14,21,28,35,42]
SIX    = [0,0,0,0,1,1,0,0,1, 0,0,0,0,0,0,1]
SC = os.environ.get("K1SC", "")
VAR = os.environ.get("K1VAR", "").split(",")

def gen_k1(name="k1_kernel"):
    a = Asm()
    a(kernel_head(name))
    st_ = Stamps(a, 0)
    st_.real(0); st_.stamp(1)
    def fin():
        st_.dump(8, "s12", "s13", "s20")
        a("s_endpgm")
    tab = []
    for q in range(4):
        w = 0
        for r in range(4):
            w |= (STARTS[q*4+r] | (SIX[q*4+r] << 6)) << (8*r)
        tab.append(w)
    a(f"""
    s_cmp_ge_u32 s2, 256
    s_cbranch_scc1 L1_exit
    s_load_dwordx4 s[4:7], s[0:1], 0
    s_load_dwordx4 s[8:11], s[0:1], 32
    s_load_dwordx2 s[12:13], s[0:1], 80
    s_load_dwordx2 s[48:49], s[0:1], 16
    s_load_dwordx2 s[50:51], s[0:1], 48
    v_lshrrev_b32 v2, 6, v0
    v_and_b32 v1, 63, v0
    v_readfirstlane_b32 s20, v2
    s_and_b32 s14, s2, 7
    s_lshr_b32 s15, s2, 3
    s_and_b32 s16, s14, 1
    s_lshl_b32 s16, s16, 3
    s_and_b32 s17, s15, 7
    s_add_u32 s16, s16, s17          ; rb
    s_lshr_b32 s14, s14, 1           ; cbq
    s_lshr_b32 s15, s15, 3           ; cbr
    s_lshl_b32 s17, s14, 2
    s_add_u32 s17, s17, s15          ; cb
    s_mov_b32 s18, {hx(tab[0])}
    s_cmp_eq_u32 s14, 1
    s_cselect_b32 s18, {hx(tab[1])}, s18
    s_cmp_eq_u32 s14, 2
    s_cselect_b32 s18, {hx(tab[2])}, s18
    s_cmp_eq_u32 s14, 3
    s_cselect_b32 s18, {hx(tab[3])}, s18
    s_lshl_b32 s15, s15, 3
    s_lshr_b32 s18, s18, s15
    s_bfe_u32 s19, s18, 0x10006
    s_and_b32 s18, s18, 63
    s_and_b32 s23, s20, 3            ; w
    v_and_b32 v2, 31, v1             ; row
    v_lshrrev_b32 v3, 5, v1          ; h
    v_bfe_u32 v4, v1, 1, 3           ; (row>>1)&7
    v_xor_b32 v4, v4, v3
    v_lshlrev_b32 v4, 4, v4
    v_lshl_add_u32 v4, v2, 7, v4
    s_lshl_b32 s40, s23, 12
    v_add_u32 v4, s40, v4            ; aX0
    v_xor_b32 v5, 32, v4
    v_xor_b32 v6, 64, v4
    v_xor_b32 v7, 96, v4
    v_bfe_u32 v8, v1, 2, 2           ; j
    v_lshl_add_u32 v8, v3, 3, v8     ; 8h+j
    v_mul_u32_u24 v8, {WROW}, v8
    v_bfe_u32 v9, v1, 4, 1           ; colhalf
    v_lshl_add_u32 v8, v9, 5, v8
    v_and_b32 v9, 3, v1
    v_lshl_add_u32 v8, v9, 3, v8
    v_add_u32 v8, {WBASE}, v8
    s_mov_b32 s21, 0
    s_movk_i32 s22, 3840
    s_mov_b32 s30, {640*3840}
    s_cmp_ge_u32 s17, 6
    s_cselect_b32 s21, 1, s21
    s_cmp_ge_u32 s17, 9
    s_cselect_b32 s21, 2, s21
    s_cselect_b32 s22, 3072, s22     ; ldw
    s_cselect_b32 s30, {640*3072}, s30
    s_cselect_b32 s34, 3072, 0
    s_cmp_ge_u32 s20, 4
    s_cbranch_scc1 L1_loader
    s_waitcnt lgkmcnt(0)
    s_mov_b32 s32, s10
    s_and_b32 s33, s11, 0xffff
    s_mov_b32 s35, 0x20000
    """)
    a.srd(36, "s12", "s13", WS_END)
    ACC = 80
    SETS = [(12, 16), (44, 48)]
    EW = 192; EX = 12; RS = 206; PT = 16
    a(f"""
    v_add_u32 v9, {WST}, v8
    v_add_u32 v10, {2*WST}, v8
    s_lshl_b32 s46, s18, 6
    v_lshlrev_b32 v11, 1, v2
    v_lshl_add_u32 v11, v3, 31, v11
    """)
    for t in range(NT):
        a(f"buffer_load_ushort v{EW+2*t+1}, v11, s[32:35], s46 offen offset:{64*t}")
    for i in range(NT*16):
        a(f"v_mov_b32 v{ACC+i}, 0")
    a("s_cmp_eq_u32 s21, 1\ns_cbranch_scc1 L1_compV")

    def reads(setn, stage, ks):
        xr, wr = SETS[setn]
        r = [f"ds_read_b128 {v(xr,4)}, v{4+ks} offset:{stage*XST}"]
        for t in range(NT):
            off = ks*16*WROW + t*64
            r.append(f"ds_read_b64_tr_b16 {v(wr+4*t,2)}, v{8+stage} offset:{off}")
            r.append(f"ds_read_b64_tr_b16 {v(wr+4*t+2,2)}, v{8+stage} offset:{off+4*WROW}")
        return r
    def mfma(var, setn, t):
        xr, wr = SETS[setn]
        A, B = (v(wr+4*t,4), v(xr,4)) if var == "T" else (v(xr,4), v(wr+4*t,4))
        return f"v_mfma_f32_32x32x16_bf16 {v(ACC+16*t,16)}, {A}, {B}, {v(ACC+16*t,16)}"
    def kstep(var, cur, rd, barrier, per=3):
        a("s_waitcnt lgkmcnt(0)")
        rd = list(rd)
        for t in range(NT):
            a(mfma(var, cur, t))
            if barrier and t == 0:
                a("s_barrier")
                continue
            for _ in range(per):
                if rd: a(rd.pop(0))
        return rd
    def csfin(t):
        b = PT + 4*t
        return [f"v_add_f32 v{b}, v{b}, v{b+1}", f"v_add_f32 v{b+2}, v{b+2}, v{b+3}", f"v_add_f32 v{b}, v{b}, v{b+2}",
                f"v_and_b32 v{b+1}, 0xffff0000, v{b}", f"v_sub_f32 v{b}, v{b}, v{b+1}", f"v_cvt_pk_bf16_f32 v{EW+2*t}, v{b+1}, v{b}"]
    def compute(var):
        st_.stamp(2)
        a("s_barrier")
        st_.stamp(3)
        for r in reads(0, 0, 0): a(r)
        a("s_mov_b32 s41, 3")
        a(".p2align 3")
        a.label(f"L1_loop{var}")
        for st in range(3):
            for ks in range(4):
                cur = ks & 1
                if ks < 3: assert not kstep(var, cur, reads(cur ^ 1, st, ks+1), False)
                else: assert not kstep(var, cur, reads(cur ^ 1, (st+1) % 3, 0), True)
        a(f"s_sub_u32 s41, s41, 1\ns_cmp_lg_u32 s41, 0\ns_cbranch_scc1 L1_loop{var}")
        st_.stamp(4)
        kstep(var, 0, reads(1, 0, 1), False)
        kstep(var, 1, reads(0, 0, 2), False)
        extra = [f"v_lshlrev_b32 v4, 4, v1", f"v_add_u32 v4, {CSP}, v4", f"s_lshl_b32 s40, s23, 9\ns_add_u32 s40, s40, {XSF}",
                 f"v_lshl_add_u32 v5, v1, 3, s40", f"s_lshl_b32 s40, s23, 7\ns_add_u32 s40, s40, {RSTD}",
                 "v_lshl_add_u32 v6, v2, 2, s40" if var == "T" else "v_lshl_add_u32 v6, v3, 4, s40"]
        assert not kstep(var, 0, reads(1, 0, 3) + extra, False)
        rd = [f"ds_read_b128 {v(PT+4*t,4)}, v4 offset:{t*1024}" for t in range(NT)]
        rd += [f"ds_read_b64 {v(EX,2)}, v5"]
        if var == "T":
            rd += [f"ds_read_b32 v{RS}, v6"]
        else:
            rd += [f"ds_read_b128 {v(RS+4*g,4)}, v6 offset:{32*g}" for g in range(4)]
        nafter = len(rd) - 2
        while len(rd) < 16: rd.append("")
        rd += [f"s_waitcnt vmcnt(0) lgkmcnt({nafter})"] + csfin(0)[:3] + csfin(0)[3:] + csfin(1)
        rest = kstep(var, 1, rd, True, per=4)
        for r in rest: a(r)
        st_.stamp(5)
        a("s_waitcnt lgkmcnt(0)")
    def emfma(var, t):
        A, B = (v(EW+2*t,2), v(EX,2)) if var == "T" else (v(EX,2), v(EW+2*t,2))
        return f"v_mfma_f32_32x32x8_bf16 {v(ACC+16*t,16)}, {A}, {B}, {v(ACC+16*t,16)}"
    def cvt(t):
        b = ACC+16*t
        for i in range(8):
            a(f"v_cvt_pk_bf16_f32 v{b+i}, v{b+2*i}, v{b+2*i+1}")
    def epi_start(var):
        a(emfma(var, 0))
        for x in csfin(2): a(x)
        a(emfma(var, 1))
        for x in csfin(3): a(x)
    def epi_tile(var, t):
        if t == NT-1:
            a("s_cmp_eq_u32 s19, 1\ns_cbranch_scc1 L1_done")
        if t+2 < NT: a(emfma(var, t+2))
        if t+4 < NT:
            for x in csfin(t+4): a(x)

    compute("T")
    epi_start("T")
    a(f"s_lshl_b32 s42, s16, 2\ns_add_u32 s42, s42, s23      ; tb")
    a("s_cmp_eq_u32 s21, 2\ns_cbranch_scc1 L1_epiF")
    a(f"""
    s_lshl_b32 s43, s42, 8
    v_lshlrev_b32 v4, 14, v3
    v_lshl_add_u32 v4, v2, 3, v4
    v_add_u32 v4, s43, v4            ; (h*2048 + token)*8
    s_lshl_b32 s43, s18, 17          ; start*8*16384
    s_mov_b32 s44, s18
    """)
    for t in range(NT):
        epi_tile("T", t)
        a(f"s_cmp_lt_u32 s44, 20\ns_cselect_b32 s45, {hx(f32(QSCALE))}, 1.0\ns_add_u32 s44, s44, 1")
        a(f"v_mul_f32 v{RS+2}, s45, v{RS}")
        b = ACC+16*t
        for i in range(8):
            a(f"v_pk_mul_f32 {v(b+2*i,2)}, {v(b+2*i,2)}, {v(RS+2,2)} op_sel_hi:[1,0]")
        cvt(t)
        for g in range(4):
            a(f"buffer_store_dwordx2 {v(b+2*g,2)}, v4, s[36:39], s43 offen {SC}")
            a(f"s_add_u32 s43, s43, 32768")
    a("s_branch L1_done")
    a.label("L1_epiF")
    a(f"""
    v_lshlrev_b32 v4, 4, v1
    s_mul_i32 s43, s42, 96
    s_lshl_b32 s44, s18, 1
    s_add_u32 s43, s43, s44
    s_lshl_b32 s43, s43, 10
    s_add_u32 s43, s43, {WS_H}
    """)
    for t in range(NT):
        epi_tile("T", t)
        b = ACC+16*t
        for i in range(8):
            a(f"v_pk_mul_f32 {v(b+2*i,2)}, {v(b+2*i,2)}, {v(RS,2)} op_sel_hi:[1,0]")
        for i in range(16):
            a(f"v_max_f32 v{b+i}, 0, v{b+i}")
        for i in range(8):
            a(f"v_pk_mul_f32 {v(b+2*i,2)}, {v(b+2*i,2)}, {v(b+2*i,2)}")
        cvt(t)
        a(f"buffer_store_dwordx4 {v(b,4)}, v4, s[36:39], s43 offen {SC}")
        a(f"buffer_store_dwordx4 {v(b+4,4)}, v4, s[36:39], s43 offen offset:1024 {SC}")
        a(f"s_add_u32 s43, s43, 2048")
    a("s_branch L1_done")
    a.label("L1_compV")
    compute("V")
    epi_start("V")
    a(f"""
    s_lshl_b32 s42, s16, 2
    s_add_u32 s42, s42, s23          ; tb
    s_mul_i32 s43, s42, 1280
    s_add_u32 s43, s43, {WS_V}
    s_sub_u32 s44, s18, 40
    s_lshl_b32 s44, s44, 5
    v_add_u32 v8, s44, v2            ; col
    v_mul_u32_u24 v9, 320, v3        ; h*320
    s_mov_b32 s45, {81920 - 320}
    """)
    for t in range(NT):
        epi_tile("V", t)
        b = ACC+16*t
        a(f"""
        v_mul_u32_u24 v10, 3277, v8
        v_lshrrev_b32 v10, 16, v10       ; head
        v_lshl_add_u32 v11, v8, 4, v9    ; col*16 + h*320
        v_mad_u32_u24 v{4+(t&1)}, v10, s45, v11  ; + head*(81920-320)
        v_add_u32 v8, 32, v8
        """)
        for i in range(8):
            a(f"v_pk_mul_f32 {v(b+2*i,2)}, {v(b+2*i,2)}, {v(RS+2*i,2)}")
        cvt(t)
        a(f"buffer_store_dwordx4 {v(b,4)}, v{4+(t&1)}, s[36:39], s43 offen {SC}")
        a(f"buffer_store_dwordx4 {v(b+4,4)}, v{4+(t&1)}, s[36:39], s43 offen offset:640 {SC}")
    a.label("L1_done")
    st_.stamp(6)
    fin()

    a.label("L1_loader")
    VX = 12; VW = 14
    XF = 24; WF = 40; SUM = 70; SQ = 72; CS = 74; ONE = 82; VP = 92
    a(f"""
    s_setprio {3 if 'prio' in VAR else 0}
    v_lshrrev_b32 v86, 3, v1
    v_mul_u32_u24 v86, 1280, v86
    v_and_b32 v87, 7, v1
    v_lshrrev_b32 v88, 4, v1
    v_xor_b32 v87, v87, v88
    v_lshl_add_u32 v{VX}, v87, 4, v86
    v_xor_b32 v{VX+1}, 64, v{VX}
    s_lshl_b32 s40, s16, 2
    s_add_u32 s40, s40, s23
    s_mul_i32 s40, s40, {32*1280}
    s_lshl_b32 s41, s23, 4
    s_mul_i32 s41, s41, s22
    s_lshl_b32 s42, s18, 6
    s_add_u32 s41, s41, s42
    s_lshl_b32 s42, s22, 6
    s_lshl_b32 s43, s23, 12          ; x lds base
    s_mul_i32 s44, s23, {16*WROW}
    s_add_u32 s44, s44, {WBASE}      ; W lds base
    s_cmp_eq_u32 s19, 1
    s_cselect_b32 s45, 24, 28
    v_mov_b32 v89, 0x80000000
    """)
    for j in range(7):
        for q in range(j*64, j*64+64):
            assert (q*2341) >> 16 == q//28
        a(f"""
        v_add_u32 v86, {j*64}, v1
        v_mul_u32_u24 v87, 2341, v86
        v_lshrrev_b32 v87, 16, v87
        v_mul_u32_u24 v88, 28, v87
        v_sub_u32 v86, v86, v88
        v_mul_lo_u32 v87, v87, s22
        v_cmp_gt_u32 vcc, s45, v86
        v_lshl_add_u32 v87, v86, 4, v87
        s_nop 0
        v_cndmask_b32 v{VW+j}, v89, v87, vcc
        """)
    a(f"""
    s_cmp_eq_u32 s21, 2
    s_waitcnt lgkmcnt(0)
    s_cselect_b32 s28, s8, s6
    s_cselect_b32 s29, s9, s7
    s_and_b32 s29, s29, 0xffff
    s_mov_b32 s31, 0x20000
    """)
    a.srd(24, "s4", "s5", 2048*1280)
    def dmas(c):
        st = c % 3
        r = []
        for j in range(4):
            r.append(f"s_add_u32 m0, s43, {st*XST + j*1024}\ns_add_u32 s46, s40, {j*8*1280 + c*128}\nbuffer_load_dwordx4 v{VX+(j&1)}, s[24:27], s46 offen lds")
        for j in range(7):
            r.append(f"s_add_u32 m0, s44, {st*WST + j*1024}\ns_nop 0\nbuffer_load_dwordx4 v{VW+j}, s[28:31], s41 offen lds" + ("\ns_add_u32 s41, s41, s42" if j == 6 else ""))
        return r
    for d in dmas(0) + dmas(1): a(d)
    a.srd(36, "s12", "s13", WS_END)
    a(f"""
    s_mul_i32 s46, s23, {16*WROW}
    v_add_u32 v8, s46, v8
    v_add_u32 v9, {WST}, v8
    v_add_u32 v10, {2*WST}, v8
    v_mov_b32 v{ONE}, 0x3f803f80
    s_cmp_lt_u32 s2, 96
    s_cselect_b32 s32, s50, s48
    s_cselect_b32 s33, s51, s49
    s_mov_b32 s34, {640*1280}
    s_cselect_b32 s34, {1536*1280}, s34
    s_and_b32 s33, s33, 0xffff
    s_mov_b32 s35, 0x20000
    s_lshl_b32 s52, s2, 4
    s_sub_u32 s53, s2, 96
    s_mul_i32 s53, s53, 20
    s_cmp_lt_u32 s2, 96
    s_cselect_b32 s52, s52, s53
    s_sub_u32 s53, s2, 128
    s_mul_i32 s53, s53, 80
    s_add_u32 s53, s53, 16
    s_cmp_lt_u32 s2, 128
    s_cselect_b32 s52, s52, s53
    s_cselect_b32 s53, 4, 40
    s_cselect_b32 s54, 8, 20
    s_mul_i32 s52, s52, 1280
    s_mul_i32 s47, s23, 320
    s_add_u32 s52, s52, s47
    s_cmp_lt_u32 s2, 136
    s_cselect_b32 s34, s34, 0
    """)
    for j in range(5):
        a(f"""
        v_add_u32 v86, {j*64}, v1
        v_mul_u32_u24 v87, 3277, v86
        v_lshrrev_b32 v87, 16, v87        ; lds row r
        v_mul_u32_u24 v88, 20, v87
        v_sub_u32 v86, v86, v88           ; piece
        v_and_b32 v88, 3, v87
        v_bfe_u32 v90, v87, 2, 1
        v_mad_u32_u24 v88, v90, s53, v88
        v_lshrrev_b32 v90, 3, v87
        v_mad_u32_u24 v88, v90, s54, v88
        v_mul_u32_u24 v88, 1280, v88
        v_lshl_add_u32 v{VP+j}, v86, 4, v88
        """)
    for i in range(SUM, CS+NT):
        a(f"v_mov_b32 v{i}, 0")
    st_.stamp(2)
    a("s_waitcnt vmcnt(11)")
    st_.stamp(3)
    a("s_barrier")
    PKL = WBASE + WST
    for c in range(NCH):
        st = c % 3
        if c+2 < NCH: dm = dmas(c+2)
        elif c == 8:
            dm = [f"s_add_u32 m0, s44, {WST + j*1024}\ns_nop 0\nbuffer_load_dwordx4 v{VP+j}, s[32:35], s52 offen lds" for j in range(5)]
        else: dm = []
        def D():
            if dm: a(dm.pop(0))
        D()
        for t in range(NT):
            a(f"ds_read_b64_tr_b16 {v(WF+4*t,2)}, v{8+st} offset:{t*64}")
            a(f"ds_read_b64_tr_b16 {v(WF+4*t+2,2)}, v{8+st} offset:{t*64+4*WROW}")
            if t == 3: D()
        D()
        a("s_waitcnt lgkmcnt(0)")
        for ks in range(4):
            a(f"ds_read_b128 {v(XF+4*ks,4)}, v{4+ks} offset:{st*XST}")
        for i in range(4):
            for t in range(NT):
                a(f"v_dot2c_f32_bf16 v{CS+t}, v{WF+4*t+i}, v{ONE}")
            D()
        if c == NCH-1:
            a("s_setprio 3")
            a(f"s_lshl_b32 s46, s23, 2\ns_add_u32 s46, s46, {CSP}")
            a(f"v_lshl_add_u32 v86, v1, 4, s46")
        a("s_waitcnt lgkmcnt(0)")
        if c == NCH-1:
            for t in range(NT):
                a(f"ds_write_b32 v86, v{CS+t} offset:{t*1024}")
        for i in range(16):
            a(f"v_dot2c_f32_bf16 v{SUM+(i&1)}, v{XF+i}, v{ONE}")
            a(f"v_dot2c_f32_bf16 v{SQ+(i&1)}, v{XF+i}, v{XF+i}")
            if i % 4 == 3: D()
        assert not dm
        if c < NCH-1:
            n = 11 if c+2 < NCH else 5
            if c in (0, 4): st_.stamp(4 + c//2)
            a(f"s_waitcnt vmcnt({n})")
            if c in (0, 4): st_.stamp(5 + c//2)
            a("s_barrier")
    a(f"""
    s_mov_b32 s47, {hx(f32(1.0/640))}
    s_nop 1
    v_add_f32 v{SUM}, v{SUM}, v{SUM+1}
    v_add_f32 v{SQ}, v{SQ}, v{SQ+1}
    v_mov_b32 v{SUM+1}, v{SUM}
    v_mov_b32 v{SQ+1}, v{SQ}
    s_nop 1
    v_permlane32_swap_b32 v{SUM}, v{SUM+1}
    v_permlane32_swap_b32 v{SQ}, v{SQ+1}
    s_nop 1
    v_add_f32 v{SUM}, v{SUM}, v{SUM+1}
    v_add_f32 v{SQ}, v{SQ}, v{SQ+1}
    v_mul_f32 v{SUM}, s47, v{SUM}              ; mean
    v_mul_f32 v{SQ}, s47, v{SQ}
    v_fma_f32 v{SQ}, -v{SUM}, v{SUM}, v{SQ}    ; var
    v_max_f32 v{SQ}, 0, v{SQ}
    v_cvt_pk_bf16_f32 v40, -v{SUM}, -v{SUM}    ; (-m,-m)
    v_cvt_pk_bf16_f32 v{SQ}, v{SQ}, v{SQ}
    v_and_b32 v{SQ}, 0xffff0000, v{SQ}
    v_add_f32 v{SQ}, {hx(f32(1e-5))}, v{SQ}
    v_cvt_pk_bf16_f32 v{SQ}, v{SQ}, v{SQ}
    v_and_b32 v{SQ}, 0xffff0000, v{SQ}
    v_sqrt_f32 v{SQ}, v{SQ}
    s_lshl_b32 s46, s23, 9
    s_add_u32 s46, s46, {XSF}
    v_cvt_pk_bf16_f32 v41, v{SQ}, 0            ; (sd, 0)
    v_lshl_add_u32 v87, v1, 3, s46
    v_lshlrev_b32 v42, 16, v41
    v_rcp_f32 v42, v42
    s_lshl_b32 s46, s23, 7
    s_add_u32 s46, s46, {RSTD}
    v_lshl_add_u32 v88, v2, 2, s46
    ds_write_b64 v87, v[40:41]
    ds_write_b32 v88, v42
    s_waitcnt lgkmcnt(0)
    s_barrier
    s_setprio 0
    s_cmp_ge_u32 s2, 136
    s_cbranch_scc1 L1_ldone
    v_bfe_u32 v86, v1, 2, 2
    v_lshl_add_u32 v86, v3, 2, v86     ; 4h + j
    v_mul_u32_u24 v86, 320, v86
    v_bfe_u32 v87, v1, 4, 1
    v_lshl_add_u32 v86, v87, 5, v86
    v_and_b32 v87, 3, v1
    v_lshl_add_u32 v86, v87, 3, v86
    s_add_u32 s46, s44, {WST}
    v_add_u32 v86, s46, v86
    v_lshlrev_b32 v87, 4, v1
    s_mul_i32 s46, s2, 20
    s_mul_i32 s47, s23, 5
    s_add_u32 s46, s46, s47
    s_lshl_b32 s46, s46, 10
    s_add_u32 s46, s46, {WS_WP}
    s_add_u32 s47, s46, 4096
    s_waitcnt vmcnt(0)
    """)
    for t in range(5):
        a(f"ds_read_b64_tr_b16 {v(WF+4*t,2)}, v86 offset:{t*64}")
        a(f"ds_read_b64_tr_b16 {v(WF+4*t+2,2)}, v86 offset:{t*64+8*320}")
    for t in range(5):
        a(f"s_waitcnt lgkmcnt({8-2*t})")
        if t < 4: a(f"buffer_store_dwordx4 {v(WF+4*t,4)}, v87, s[36:39], s46 offen offset:{t*1024} {SC}")
        else: a(f"buffer_store_dwordx4 {v(WF+4*t,4)}, v87, s[36:39], s47 offen {SC}")
    a.label("L1_ldone")
    if STAMP: fin()
    a.label("L1_exit")
    a("s_endpgm")
    if 'nodot' in VAR: a.lines = [l for l in a.lines if 'v_dot2c' not in l]
    if 'nolds' in VAR:
        i = a.lines.index('L1_loader:')
        a.lines = a.lines[:i] + [l for l in a.lines[i:] if 'ds_read' not in l]
    if 'nomfma' in VAR: a.lines = [l for l in a.lines if 'v_mfma_f32_32x32x16' not in l]
    if 'nocread' in VAR:
        i = a.lines.index('L1_loader:')
        a.lines = [l for l in a.lines[:i] if 'ds_read_b64_tr' not in l] + a.lines[i:]
    if 'nodma' in VAR: a.lines = [l for l in a.lines if ' lds' not in l]
    return a.text(), kernel_desc(name, 224), f"; @launch kernel={name} grid=(256,1,1) block=(512,1,1) lds={K1_LDS}"
```

```python
from asmlib import *
import numpy as np

KVS = 10240
K2_LDS = 16*KVS
RED = 1024
VAR = os.environ.get('K2VAR', '').split(',')

def decode_f(flat):
    f = flat.reshape(64, 4, 5, 2, 2, 32, 8)
    out = np.zeros((64, 32, 4, 160), np.float32)
    for t in range(5):
        for q in range(2):
            for h in range(2):
                for j in range(8):
                    col = 32*t + 16*q + (j & 3) + 8*(j >> 2) + 4*h
                    out[:, :, :, col] = f[:, :, t, q, h, :, j].transpose(0, 2, 1)
    return out.reshape(2048, 640)

def tile_ids(a):
    a("""
    s_lshr_b32 s18, s14, 1
    s_lshl_b32 s18, s18, 4
    s_and_b32 s19, s15, 15
    s_add_u32 s18, s18, s19          ; ftb
    s_and_b32 s19, s14, 1
    s_lshl_b32 s19, s19, 1
    s_lshr_b32 s21, s15, 4
    s_add_u32 s19, s19, s21          ; fcb
    """)

def gen_k2(name="k2_kernel"):
    a = Asm()
    a(kernel_head(name))
    st_ = Stamps(a, 1)
    st_.real(0); st_.stamp(1)
    def fin():
        st_.dump(8, "s12", "s13", "s20")
        a("s_endpgm")
    a(f"""
    s_cmp_ge_u32 s2, 256
    s_cbranch_scc1 L2_exit
    s_load_dwordx2 s[12:13], s[0:1], 80
    v_lshrrev_b32 v2, 6, v0
    v_and_b32 v1, 63, v0
    v_readfirstlane_b32 s20, v2
    s_and_b32 s14, s2, 7             ; j
    s_lshr_b32 s15, s2, 3            ; i
    s_lshl_b32 s16, s14, 2
    s_and_b32 s17, s15, 3
    s_add_u32 s16, s16, s17          ; head
    s_lshr_b32 s17, s15, 2           ; qb
    v_and_b32 v2, 31, v1
    v_lshrrev_b32 v3, 5, v1          ; h
    s_cmp_ge_u32 s20, 8
    s_cbranch_scc1 L2_aux
    """)
    aK1, aK2, aV, IDX = 4, 5, 6, 7
    Q1 = 8; Q2 = 12; K2 = 14; K1 = 16
    V = [[20+8*p, 24+8*p] for p in range(4)]
    S = [52, 68]; O = 84; N = 100; T0 = 116
    VMASK = 0x000fffff
    a(f"""
    s_lshl_b32 s40, s17, 3
    s_add_u32 s40, s40, s20          ; tbq
    s_mul_i32 s41, s16, {5*16384}
    s_lshl_b32 s42, s40, 8
    s_add_u32 s41, s41, s42
    s_add_u32 s42, s41, 16384
    s_add_u32 s43, s41, 65536
    v_lshlrev_b32 v{T0}, 3, v2
    v_lshl_add_u32 v{T0+1}, v3, 15, v{T0}   ; 2h planes
    v_lshl_add_u32 v{T0+2}, v3, 31, v{T0}
    s_waitcnt lgkmcnt(0)
    """)
    a.srd(28, "s12", "s13", WS_END)
    a(f"buffer_load_dwordx2 {v(Q1,2)}, v{T0+1}, s[28:31], s41 offen")
    a(f"buffer_load_dwordx2 {v(Q1+2,2)}, v{T0+1}, s[28:31], s42 offen")
    a(f"buffer_load_dwordx2 {v(Q2,2)}, v{T0+2}, s[28:31], s43 offen")
    def sigma8():
        a(f"""
        v_and_b32 v{T0}, 19, v2
        v_bfe_u32 v{T0+1}, v2, 2, 1
        v_lshl_add_u32 v{T0}, v{T0+1}, 3, v{T0}
        v_bfe_u32 v{T0+1}, v2, 3, 1
        v_lshl_add_u32 v{T0}, v{T0+1}, 2, v{T0}   ; sigma(row)
        v_lshlrev_b32 v{T0}, 3, v{T0}
        v_mul_u32_u24 v{T0+1}, 20, v3
        v_add_u32 v{T0+1}, v{T0+1}, v2
        v_lshlrev_b32 v{T0+1}, 4, v{T0+1}
        """)
    sigma8()
    a(f"""
    v_lshl_add_u32 v{aK1}, v3, 11, v{T0}
    v_add_u32 v{aK2}, 4096, v{T0}
    v_add_u32 v{aV}, 5120, v{T0+1}
    v_mov_b32 v{IDX}, 0xdddddddd
    v_mov_b32 v{T0}, 0x3f803f80
    v_cmp_eq_u32 vcc, 20, v2
    s_mov_b32 s46, {hx(VMASK)}
    s_mov_b32 s47, {hx(VMASK)}
    v_cndmask_b32 v20, 0, v{T0}, vcc
    """)
    for r in range(21, 52): a(f"v_mov_b32 v{r}, v20")
    for r in list(range(O, O+16)) + list(range(S[1]+8, S[1]+16)):
        a(f"v_mov_b32 v{r}, 0")
    def block(t):
        ko = (t >> 2)*KVS + (t & 3)*256
        vo = (t >> 2)*KVS + (t & 3)*1280
        p = t & 3
        return ["s_mov_b64 exec, s[46:47]",
                f"ds_read_b128 {v(V[p][0],4)}, v{aV} offset:{vo}",
                f"ds_read_b128 {v(V[p][1],4)}, v{aV} offset:{vo+640}",
                "s_mov_b64 exec, -1",
                f"ds_read_b64 {v(K1,2)}, v{aK1} offset:{ko}",
                f"ds_read_b64 {v(K1+2,2)}, v{aK1} offset:{ko+1024}",
                f"ds_read_b64 {v(K2,2)}, v{aK2} offset:{ko}"]
    def M1(X, c): return f"v_mfma_f32_32x32x16_bf16 {v(S[X],16)}, {v(K1,4)}, {v(Q1,4)}, {c}"
    def M2(X): return f"v_mfma_f32_32x32x8_bf16 {v(S[X],16)}, {v(K2,2)}, {v(Q2,2)}, {v(S[X],16)}"
    def SM(X, p, f): return f"v_smfmac_f32_32x32x32_bf16 {v(O,16)}, {v(V[p][f],4)}, {v(S[X]+8*f,8)}, v{IDX}"
    def rowmax():
        b = S[0]
        a(f"v_max3_f32 v{N}, v{b}, v{b+1}, v{b+2}")
        for i in range(3, 15, 2):
            a(f"v_max3_f32 v{N}, v{N}, v{b+i}, v{b+i+1}")
        a(f"v_max_f32 v{N}, v{N}, v{b+15}")
    def bcast_neg():
        a(f"v_mov_b32 v{N+1}, v{N}\ns_nop 1\nv_permlane32_swap_b32 v{N}, v{N+1}\ns_nop 1")
        a(f"v_max_f32 v{N}, v{N}, v{N+1}\nv_sub_f32 v{N}, 0, v{N}")
        for i in range(1, 16): a(f"v_mov_b32 v{N+i}, v{N}")
    st_.stamp(2)
    a("s_barrier")
    st_.stamp(3)
    for r in block(0): a(r)
    a("s_waitcnt vmcnt(0) lgkmcnt(0)")
    a(M1(0, "0")); a(M2(0))
    a("s_nop 11")
    rowmax(); bcast_neg()
    for i in range(16): a(f"v_add_f32 v{S[0]+i}, v{S[0]+i}, v{N}")
    a("s_mov_b32 s45, 0")
    st_.stamp(4)
    a(".p2align 3")
    a.label("L2_loop")
    for t in range(16):
        X = t & 1
        e = [f"v_exp_f32 v{S[X]+i}, v{S[X]+i}" for i in range(16)]
        if t == 3:
            a("s_cmp_lg_u32 s45, 0\ns_cbranch_scc1 L2_nb3\ns_barrier")
            a.label("L2_nb3")
        if t == 15:
            a("s_cmp_gt_u32 s45, 1\ns_cbranch_scc1 L2_nb15\ns_barrier")
            a.label("L2_nb15")
            a("s_add_u32 s45, s45, 1\ns_cmp_eq_u32 s45, 4\ns_cbranch_scc1 L2_nord")
        for r in block(t+1): a(r)
        if t == 15: a.label("L2_nord")
        seq = [e[0], SM(X ^ 1, (t-1) & 3, 1), "s_setprio 1", "s_waitcnt lgkmcnt(0)"] + e[1:5]
        seq += [M1(X ^ 1, v(N,16)), "s_setprio 2"] + e[5:9] + [M2(X ^ 1)] + e[9:13] + [SM(X, t & 3, 0)] + e[13:16]
        if t == 15:
            seq += [f"v_add_u32 v{r}, {4*KVS}, v{r}" for r in (aK1, aK2, aV)]
        seq += ["s_setprio 0"]
        for x in seq:
            if 'noqk' in VAR and x.startswith('v_mfma'): x = 's_nop 1' if 'x16' in x else 's_nop 0'
            if 'nopv' in VAR and x.startswith('v_smfmac'): x = 's_nop 2'
            if 'noexp' in VAR and x.startswith('v_exp'): x = 's_nop 1'
            if 'noc' in VAR and x.startswith('v_mfma') and 'x16' in x: x = x[:x.rindex(',')] + ', 0'
            a(x)
    a("s_cbranch_scc0 L2_loop")
    st_.stamp(5)
    a(SM(1, 3, 1))
    a(f"""
    s_lshl_b32 s42, s40, 5
    s_add_u32 s42, s42, s16
    s_lshl_b32 s42, s42, 10
    s_add_u32 s42, s42, {WS_OM}
    s_lshl_b32 s43, s40, 4
    s_lshr_b32 s44, s16, 1
    s_add_u32 s43, s43, s44
    s_lshl_b32 s43, s43, 9
    s_and_b32 s44, s16, 1
    s_lshl_b32 s44, s44, 3
    s_add_u32 s43, s43, s44
    s_add_u32 s43, s43, {WS_OT}
    s_mov_b32 s48, {hx(f32(2.0**40))}
    """)
    def getl():
        a(f"v_mov_b32 v{T0}, v{O+8}\nv_mov_b32 v{T0+1}, v{O+8}\ns_nop 1\nv_permlane32_swap_b32 v{T0}, v{T0+1}\ns_nop 1")
    getl()
    a(f"v_cmp_nlt_f32 vcc, v{T0+1}, s48")
    a(f"s_nop 4\ns_cbranch_vccz L2_ok")
    if VAR != ['']: a("s_branch L2_ok")
    a.c("fallback: true row max over all keys, then recompute this q tile (K/V straight from memory)")
    sigma8()
    a(f"""
    s_mul_i32 s50, s16, {5*16384}
    s_add_u32 s50, s50, {160*16384}
    v_lshl_add_u32 v{aK1}, v3, 15, v{T0}
    v_add_u32 v{T0+3}, 16384, v{aK1}
    v_add_u32 v{aK2}, 65536, v{T0}
    v_mov_b32 v{aV}, v{T0+1}
    v_mov_b32 v{T0+2}, 0xff800000
    s_mov_b32 s51, s50
    s_mov_b32 s52, 64
    """)
    def kload():
        a(f"buffer_load_dwordx2 {v(K1,2)}, v{aK1}, s[28:31], s51 offen")
        a(f"buffer_load_dwordx2 {v(K1+2,2)}, v{T0+3}, s[28:31], s51 offen")
        a(f"buffer_load_dwordx2 {v(K2,2)}, v{aK2}, s[28:31], s51 offen")
    a.label("L2_fb1")
    kload()
    a("s_waitcnt vmcnt(0)")
    a(M1(0, "0")); a(M2(0)); a("s_nop 11")
    rowmax()
    a(f"v_max_f32 v{T0+2}, v{T0+2}, v{N}")
    a(f"s_add_u32 s51, s51, 256\ns_sub_u32 s52, s52, 1\ns_cmp_lg_u32 s52, 0\ns_cbranch_scc1 L2_fb1")
    a(f"v_mov_b32 v{N}, v{T0+2}")
    bcast_neg()
    for i in range(16): a(f"v_mov_b32 v{O+i}, 0")
    a(f"""
    s_mov_b32 s51, s50
    s_mul_i32 s53, s16, 81920
    s_add_u32 s53, s53, {WS_V}
    s_mov_b32 s52, 64
    """)
    a.label("L2_fb2")
    kload()
    a("s_mov_b64 exec, s[46:47]")
    a(f"buffer_load_dwordx4 {v(V[0][0],4)}, v{aV}, s[28:31], s53 offen")
    a(f"buffer_load_dwordx4 {v(V[0][1],4)}, v{aV}, s[28:31], s53 offen offset:640")
    a("s_mov_b64 exec, -1")
    a("s_waitcnt vmcnt(0)")
    a(M1(0, v(N,16))); a(M2(0)); a("s_nop 11")
    for i in range(16): a(f"v_exp_f32 v{S[0]+i}, v{S[0]+i}")
    a("s_nop 1")
    a(SM(0, 0, 0)); a(SM(0, 0, 1))
    a(f"s_add_u32 s51, s51, 256\ns_add_u32 s53, s53, 1280\ns_sub_u32 s52, s52, 1\ns_cmp_lg_u32 s52, 0\ns_cbranch_scc1 L2_fb2")
    a("s_nop 11")
    getl()
    a.label("L2_ok")
    a(f"v_rcp_f32 v{T0}, v{T0+1}")
    a(f"v_lshlrev_b32 v4, 4, v1\nv_lshlrev_b32 v5, 4, v2\nv_lshl_add_u32 v5, v3, 31, v5")
    for i in range(6):
        a(f"v_pk_mul_f32 {v(O+2*i,2)}, {v(O+2*i,2)}, {v(T0,2)} op_sel_hi:[1,0]")
    for i in range(6):
        a(f"v_cvt_pk_bf16_f32 v{O+i}, v{O+2*i}, v{O+2*i+1}")
    a(f"buffer_store_dwordx4 {v(O,4)}, v4, s[28:31], s42 offen")
    a(f"buffer_store_dwordx2 {v(O+4,2)}, v5, s[28:31], s43 offen")
    st_.stamp(6)
    fin()

    a.label("L2_aux")
    VK = 4; VL = 7; SETS = [16, 40, 64]; ACC = 88
    tile_ids(a)
    a(f"""
    s_and_b32 s23, s20, 3             ; w
    s_and_b32 s40, s23, 1
    s_mul_i32 s40, s40, 2560
    v_lshlrev_b32 v{VL}, 4, v1
    s_mul_i32 s41, s16, {5*16384}
    s_add_u32 s41, s41, {160*16384}
    s_mul_i32 s42, s16, 81920
    s_add_u32 s42, s42, {WS_V}
    s_movk_i32 s43, 5120
    s_mov_b32 s44, 0
    s_cmp_lt_u32 s23, 2
    s_cselect_b32 s41, s41, s42
    s_cselect_b32 s43, 1024, s43
    s_cselect_b32 s44, {16384-1024}, s44
    s_mul_i32 s42, s23, 2560
    """)
    for j in range(3):
        a(f"""
        s_add_u32 s45, s40, {j*1024}
        v_add_u32 v8, s45, v{VL}
        v_lshrrev_b32 v9, 10, v8
        v_mad_u32_u24 v{VK+j}, v9, s44, v8
        """)
    a(f"""
    s_mul_i32 s46, s23, {24*20}
    s_mul_i32 s47, s19, 5
    s_add_u32 s46, s46, s47
    s_lshl_b32 s46, s46, 10
    s_add_u32 s46, s46, {WS_WP}
    s_mul_i32 s47, s18, 96
    s_mul_i32 s48, s23, 24
    s_add_u32 s47, s47, s48
    s_lshl_b32 s47, s47, 10
    s_add_u32 s47, s47, {WS_H}
    s_waitcnt lgkmcnt(0)
    """)
    a.srd(28, "s12", "s13", WS_END)
    vm = VmTrack(a)
    def issue_kv(k):
        for j in range(3):
            if j == 2: a("s_mov_b32 exec_hi, 0")
            a(f"s_add_u32 m0, s42, {k*KVS + j*1024}\ns_nop 0")
            vm.op(f"buffer_load_dwordx4 v{VK+j}, s[28:31], s41 offen lds", ("kv", k))
        a("s_mov_b32 exec_hi, -1\ns_add_u32 s41, s41, s43")
    def issue_f(i):
        b = SETS[i % 3]
        if 'nofl' in VAR:
            vm.tags[("f", i)] = vm.n
            return
        vm.op(f"buffer_load_dwordx4 {v(b,4)}, v{VL}, s[28:31], s47 offen")
        for t in range(4):
            vm.op(f"buffer_load_dwordx4 {v(b+4+4*t,4)}, v{VL}, s[28:31], s46 offen offset:{t*1024}")
        a("s_add_u32 s48, s46, 4096")
        vm.op(f"buffer_load_dwordx4 {v(b+20,4)}, v{VL}, s[28:31], s48 offen", ("f", i))
        a(f"s_add_u32 s46, s46, {20*1024}\ns_add_u32 s47, s47, 1024")
    issue_kv(0); issue_kv(1)
    st_.stamp(2)
    vm.wait(("kv", 0))
    st_.stamp(3)
    a("s_barrier")
    issue_kv(2); issue_kv(3)
    issue_f(0)
    vm.wait(("kv", 3))
    a("s_barrier")
    issue_f(1); issue_f(2)
    kvplan = {0: [4, 5], 1: [6, 7], 2: [8], 3: [9], 4: [10], 5: [11], 6: [12], 7: [13], 8: [14, 15]}
    for i in range(24):
        vm.wait(("f", i))
        b = SETS[i % 3]
        for t in range(5):
            c = "0" if i == 0 else v(ACC+16*t,16)
            if 'noffn' not in VAR: a(f"v_mfma_f32_32x32x16_bf16 {v(ACC+16*t,16)}, {v(b+4+4*t,4)}, {v(b,4)}, {c}")
        for k in kvplan.get(i, []): issue_kv(k)
        if i+3 < 24: issue_f(i+3)
        if i == 3:
            vm.wait(("kv", 7))
            st_.stamp(4)
            a("s_barrier")
            a("v_mov_b32 v8, 0\nds_write_b32 v8, v8")
        if i == 10:
            vm.wait(("kv", 15))
            st_.stamp(5)
            a("s_waitcnt lgkmcnt(0)\ns_barrier")
    st_.stamp(6)
    a('s_setprio 3')
    a(f"""
    s_lshl_b32 s41, s18, 2
    s_add_u32 s41, s41, s19
    s_mul_i32 s41, s41, 10240
    s_lshr_b32 s42, s23, 1
    s_lshl_b32 s42, s42, 10
    s_add_u32 s41, s41, s42
    s_and_b32 s42, s23, 1
    s_lshl_b32 s42, s42, 3
    s_add_u32 s41, s41, s42
    s_add_u32 s41, s41, {WS_F}
    s_add_u32 s42, s41, 4096
    s_add_u32 s43, s41, 8192
    v_mov_b32 v8, 0
    v_mov_b32 v9, 1
    """)
    for w in range(3):
        a(f"s_cmp_eq_u32 s23, {w}\ns_cbranch_scc1 L2_red{w}")
    for w in (3, 0, 1, 2):
        if w != 3: a.label(f"L2_red{w}")
        for g in range(4):
            if g == w: continue
            sl = w if w < g else w-1
            for t in range(5):
                a(f"ds_write_b128 v{VL}, {v(ACC+16*t+4*g,4)} offset:{RED + ((g*3+sl)*5+t)*1024}")
        a("s_waitcnt lgkmcnt(0)")
        a("s_mov_b64 exec, 1\nds_add_u32 v8, v9\ns_mov_b64 exec, -1")
        a.label(f"L2_poll{w}")
        a(f"""
        s_sleep 1
        ds_read_b32 v10, v8
        s_waitcnt lgkmcnt(0)
        v_readfirstlane_b32 s44, v10
        s_cmp_lt_u32 s44, 4
        s_cbranch_scc1 L2_poll{w}
        """)
        for t in range(5):
            for sl in range(3):
                a(f"ds_read_b128 {v(16+(t*3+sl)*4,4)}, v{VL} offset:{RED + ((w*3+sl)*5+t)*1024}")
        for t in range(5):
            a(f"s_waitcnt lgkmcnt({12-3*t})")
            o = ACC+16*t+4*w; b = 16+t*12
            for hh in range(2):
                a(f"v_pk_add_f32 {v(o+2*hh,2)}, {v(o+2*hh,2)}, {v(b+2*hh,2)}")
                a(f"v_pk_add_f32 {v(b+4+2*hh,2)}, {v(b+4+2*hh,2)}, {v(b+8+2*hh,2)}")
            for hh in range(2):
                a(f"v_pk_add_f32 {v(o+2*hh,2)}, {v(o+2*hh,2)}, {v(b+4+2*hh,2)}")
            a(f"v_cvt_pk_bf16_f32 v{o}, v{o}, v{o+1}\nv_cvt_pk_bf16_f32 v{o+1}, v{o+2}, v{o+3}")
            a(f"buffer_store_dwordx2 {v(o,2)}, v{VL}, s[28:31], s{41+t//2} offen offset:{(t&1)*2048}")
        st_.stamp(7)
        fin()
    a.label("L2_exit")
    a("s_endpgm")
    return a.text(), kernel_desc(name, 168), f"; @launch kernel={name} grid=(256,1,1) block=(768,1,1) lds={K2_LDS}"
```

```python
import sys
sys.path.insert(0, "mb")
HEAD = """; @launch grid=(1,1,1) block=({block},1,1) lds=0
.amdgcn_target "amdgcn-amd-amdhsa--gfx950"
.text
.globl mb_kernel
.p2align 8
.type mb_kernel,@function
mb_kernel:
    s_load_dwordx2 s[4:5], s[0:1], 0
    s_load_dwordx2 s[6:7], s[0:1], 8
    v_lshrrev_b32 v1, 6, v0
    s_nop 0
    v_readfirstlane_b32 s20, v1
    s_waitcnt lgkmcnt(0)
    s_mov_b32 s8, s6
    s_mov_b32 s9, s7
    s_mov_b32 s10, 0x40000
    s_mov_b32 s11, 0x20000
{init}
    s_barrier
    s_mov_b32 s21, {iters}
    s_memtime s[12:13]
    s_waitcnt lgkmcnt(0)
{dispatch}
"""
TAIL = """
L_end:
    s_nop 15
    s_nop 15
    s_memtime s[14:15]
    s_waitcnt lgkmcnt(0)
    s_sub_u32 s14, s14, s12
    s_lshl_b32 s16, s2, 4
    s_add_u32 s16, s16, s20
    s_lshl_b32 s16, s16, 2
    v_mov_b32 v1, s16
    v_mov_b32 v2, s14
    v_cmp_eq_u32 vcc, 0, v0
    v_and_b32 v3, 63, v0
    v_cmp_eq_u32 vcc, 0, v3
    s_and_saveexec_b64 s[18:19], vcc
    buffer_store_dword v2, v1, s[8:11], 0 offen
    s_waitcnt vmcnt(0)
    s_endpgm
.section .rodata,"a"
.p2align 6
.amdhsa_kernel mb_kernel
  .amdhsa_next_free_vgpr {nvgpr}
  .amdhsa_next_free_sgpr 102
  .amdhsa_accum_offset {acc}
  .amdhsa_group_segment_fixed_size 0
  .amdhsa_kernarg_size 16
  .amdhsa_user_sgpr_count 2
  .amdhsa_user_sgpr_kernarg_segment_ptr 1
  .amdhsa_system_sgpr_workgroup_id_x 1
.end_amdhsa_kernel
"""
def gen(bodies, block, iters=1000, nvgpr=128, init="", rolefn=None):
    nw = block // 64
    if rolefn is None:
        rolefn = lambda w: (w // 4) % len(bodies)
    disp = ""
    for w in range(nw):
        disp += f"    s_cmp_eq_u32 s20, {w}\n    s_cbranch_scc1 L_role{rolefn(w)}\n"
    init0 = "\n".join(f"    v_mov_b32 v{i}, 0" for i in range(4, nvgpr))
    s = HEAD.format(block=block, iters=iters, dispatch=disp, init=init0 + "\n" + init)
    for i, b in enumerate(bodies):
        s += f"    .p2align 6\nL_role{i}:\n{b}\n    s_sub_u32 s21, s21, 1\n    s_cmp_lg_u32 s21, 0\n    s_cbranch_scc1 L_role{i}\n    s_branch L_end\n"
    s += TAIL.format(nvgpr=nvgpr, acc=nvgpr)
    return s
```

```python
def unit(cur, nxt, pat, F):
    out = []; ei = 0; di = 0
    for c in pat:
        if c == "e": out.append(f"v_exp_f32 v{cur+ei}, v{cur+ei}"); ei += 1
        elif c == "A": out.append(f"v_smfmac_f32_32x32x32_bf16 v[64:79], v[20:23], v[{nxt+8}:{nxt+15}], v28")
        elif c == "B": out.append(f"v_mfma_f32_32x32x16_bf16 v[{nxt}:{nxt+15}], v[8:11], v[12:15], v[80:95]")
        elif c == "C": out.append(f"v_mfma_f32_32x32x8_bf16 v[{nxt}:{nxt+15}], v[16:17], v[18:19], v[{nxt}:{nxt+15}]")
        elif c == "D": out.append(f"v_smfmac_f32_32x32x32_bf16 v[64:79], v[24:27], v[{cur}:{cur+7}], v28")
        elif c == "F":
            if F: out.append(f"v_mfma_f32_32x32x16_bf16 v[96:111], v[8:11], v[12:15], v[96:111]")
        elif c == "d": out.append(f"ds_read_b64 v[{112+2*(di%8)}:{113+2*(di%8)}], v4"); di += 1
        elif c == "q": out.append(f"ds_read_b128 v[112:115], v4")
        elif c == "t": out.append(f"ds_read_b64_tr_b16 v[116:117], v4")
        elif c == "w": out.append("s_waitcnt lgkmcnt(0)")
        elif c == "n": out.append("s_nop 0")
        elif c == "x": out.append("s_mov_b64 exec, -1")
        elif c == "p": out.append("s_setprio 0")
        elif c == "P": out.append("s_setprio 1")
        elif c in "0123": out.append(f"s_setprio {c}")
        elif c == "L": out.append("buffer_load_dwordx4 v[120:123], v5, s[40:43], s45 offen"); out.append("s_add_u32 s45, s45, 8192")
        elif c == "v": out.append("s_waitcnt vmcnt(8)")
        elif c == "W": out.append("s_waitcnt vmcnt(8) lgkmcnt(0)")
    assert ei == 16, pat
    return "\n".join("    " + l for l in out)
```

```python
import sys
sys.path.insert(0, "mb")
import gen1
from gen1 import gen
from mbrun import run, build
import numpy as np
from mb6u import unit
pats = [
 "xqqxqdLLeA1WeeeB2eeeFeeeCeeeeDee0",
 "xqqxqdLLeA1WeeeB2eeeF3eeeCeeeeDee0",
 "xqqxqdLLeA1WeeeF2eeeBeeeCeeeeDee0",
 "xqqxqdLLeA1WeeeB2eeeeCeeeDeeeFee0",
 "xqqxqdLLeB1WeeeA2eeeFeeeCeeeeDee0",
 "xqqxqdLLeeA1WeeeB2eeeFeeeCeeeeDe0",
 "xqqxqdLLeA1WeeeB2eeeFeeeDeeeCeee0",
 "xqqxqdLLeC1WeeeeA2eeeBeeeDeeeFee0",
 "xqqxqdLLeA1WeeeeB2eeeeCeeeeDeee0",
 "xqqxqdLLeA1WeeFeeB2eeFeeeCeeeDeee0",
]
dry = len(sys.argv) > 1
cnt = 1600
IT = 800
init = """    v_lshlrev_b32 v4, 4, v0
    v_and_b32 v4, 1023, v4
    v_lshlrev_b32 v5, 4, v0
    s_mov_b32 s40, s4
    s_mov_b32 s41, s5
    s_mov_b32 s42, 0x400000
    s_mov_b32 s43, 0x20000
    s_mov_b32 s45, 0"""
for pat in pats:
    U = 8
    body = []
    for i in range(U):
        body.append(unit(32, 48, pat, 1) if i % 2 == 0 else unit(48, 32, pat, 1))
    body.append("    s_and_b32 s45, s45, 0xfffff")
    s = gen(["\n".join(body)], 512, iters=IT//U, nvgpr=128, init=init)
    cnt += 1
    fn = f"_t{cnt}.s"
    open(fn, "w").write(s)
    if dry:
        build(fn, "mb_kernel", 2); continue
    o = run(fn, "mb_kernel", 256, 512, 4096)
    print(f"{pat:40s}:", " ".join(f"{x/IT:.1f}" for x in o[:8:4]))
```
